```python
import torch

def _softmax(x, axis=-1):
    return torch.softmax(x, dim=axis)
def _gelu(x):
    return torch.nn.functional.gelu(x, approximate="tanh")
def _silu(x):
    return torch.nn.functional.silu(x)
def _sigmoid(x):
    return torch.sigmoid(x)
def _layernorm(x, axis=-1, eps=1e-5):
    m = x.mean(dim=axis, keepdim=True)
    v = x.var(dim=axis, keepdim=True, unbiased=False)
    return (x - m) / torch.sqrt(v + eps)
def _scatter_add(tgt, idx, src, axis=0):
    return tgt.clone().index_add_(axis, idx, src)
def _segment_sum(src, seg, n):
    out = torch.zeros((n,) + src.shape[1:], dtype=src.dtype)
    return out.index_add_(0, seg, src)
def _pad(x, pw):
    flat = tuple(v for pair in reversed(pw) for v in pair)
    return torch.nn.functional.pad(x, flat)

kernel_name = 'gated_mix__ssm_conv_s4d__ssm_conv_s5__prompt'

def setup_inputs():

    _w = (lambda a: (lambda t: t.to(torch.bfloat16) if t.is_floating_point() else t)(torch.as_tensor(a)))
    def _A_setup():
        Bsz, L, D, N = 1, 2048, 576, 128
        return {
            "u": _w((lambda *s: torch.randn(*s, dtype=torch.bfloat16) * 0.05)(Bsz, L, D)),
            "log_A_real": _w((lambda *s: torch.randn(*s, dtype=torch.bfloat16) * 3.2)(D, N) * 0.5),
            "A_imag": _w((lambda *s: torch.randn(*s, dtype=torch.bfloat16) * 0.05)(D, N) * 3.14),
            "C_real": _w((lambda *s: torch.randn(*s, dtype=torch.bfloat16) * 0.1)(D, N) / N ** 0.5),
            "C_imag": _w((lambda *s: torch.randn(*s, dtype=torch.bfloat16) * 0.1)(D, N) / N ** 0.5),
            "log_dt": _w((lambda *s: torch.randn(*s, dtype=torch.bfloat16) * 0.05)(D) * 0.5 - 4.0),
            "D_skip": _w((lambda *s: torch.randn(*s, dtype=torch.bfloat16) * 0.05)(D)),
        }
    _A_in = _A_setup()

    def _B_setup():
        B, S, D = 1, 2048, 576
        P = D
        Lambda_re = -0.5 * (lambda _x: torch.exp(torch.as_tensor(_x)))((lambda *s: torch.randn(*s, dtype=torch.bfloat16) * 0.2)(P))
        Lambda_im = (lambda *s: torch.randn(*s, dtype=torch.bfloat16) * 0.4)(P) * 1.0
        B_re = (lambda *s: torch.randn(*s, dtype=torch.bfloat16) * 0.2)(P, D) * (D ** -0.5)
        B_im = (lambda *s: torch.randn(*s, dtype=torch.bfloat16) * 0.2)(P, D) * (D ** -0.5)
        C_re = (lambda *s: torch.randn(*s, dtype=torch.bfloat16) * 0.2)(D, P) * (P ** -0.5)
        C_im = (lambda *s: torch.randn(*s, dtype=torch.bfloat16) * 0.2)(D, P) * (P ** -0.5)
        log_dt = (lambda *s: torch.randn(*s, dtype=torch.bfloat16) * 0.2)(P) * 0.3 - 2.0
        Dskip = (lambda *s: torch.randn(*s, dtype=torch.bfloat16) * 0.05)(D)
        return {
            "x": _w((lambda *s: torch.randn(*s, dtype=torch.bfloat16) * 0.05)(B, S, D)),
            "Lambda_re": _w(Lambda_re),
            "Lambda_im": _w(Lambda_im),
            "B_re": _w(B_re),
            "B_im": _w(B_im),
            "C_re": _w(C_re),
            "C_im": _w(C_im),
            "log_dt": _w(log_dt),
            "Dskip": _w(Dskip),
        }
    _B_in = _B_setup()

    return {
        "A_u": _A_in["u"],
        "A_log_A_real": _A_in["log_A_real"],
        "A_A_imag": _A_in["A_imag"],
        "A_C_real": _A_in["C_real"],
        "A_C_imag": _A_in["C_imag"],
        "A_log_dt": _A_in["log_dt"],
        "A_D_skip": _A_in["D_skip"],
        "B_x": _B_in["x"],
        "B_Lambda_re": _B_in["Lambda_re"],
        "B_Lambda_im": _B_in["Lambda_im"],
        "B_B_re": _B_in["B_re"],
        "B_B_im": _B_in["B_im"],
        "B_C_re": _B_in["C_re"],
        "B_C_im": _B_in["C_im"],
        "B_log_dt": _B_in["log_dt"],
        "B_Dskip": _B_in["Dskip"],
        "gate_w": _w((lambda *s: torch.randn(*s, dtype=torch.bfloat16) * 0.05)(576) * 16.0),
    }

def reference(A_u, A_log_A_real, A_A_imag, A_C_real, A_C_imag, A_log_dt, A_D_skip, B_x, B_Lambda_re, B_Lambda_im, B_B_re, B_B_im, B_C_re, B_C_im, B_log_dt, B_Dskip, gate_w):
    def _A_ref(u, log_A_real, A_imag, C_real, C_imag, log_dt, D_skip):
        L = u.shape[1]
        dt = torch.exp(log_dt)
        A = -torch.exp(log_A_real) + 1j * A_imag
        C = (C_real + 1j * C_imag) * dt[:, None]
        pos = (lambda x, dt: x.to(dt))(torch.arange(L), log_dt.dtype)
        P = torch.exp((A * dt[:, None])[:, :, None] * pos[None, None, :])
        K = 2.0 * torch.einsum("dn,dnl->dl", C, P).real
        L2 = 2 * L
        u_t = (lambda x, *d: x.permute(*d))(u, 0, 2, 1)
        Kf = (lambda x, *a, **k: torch.fft.rfft(x.float(), *a, **k))(K, L2)
        Uf = (lambda x, *a, **k: torch.fft.rfft(x.float(), *a, **k))(u_t, L2)
        y = (lambda x, *a, **k: torch.fft.irfft(x, *a, **k).to(torch.bfloat16))(Uf * Kf[None, :, :], L2)[:, :, :L]
        y = (lambda x, *d: x.permute(*d))(y, 0, 2, 1)
        return y + u * D_skip[None, None, :]

    def _B_ref(x, Lambda_re, Lambda_im, B_re, B_im, C_re, C_im, log_dt, Dskip):
        Bsz, L, H = x.shape
        Lam = Lambda_re + 1j * Lambda_im
        Bmat = B_re + 1j * B_im
        Cmat = C_re + 1j * C_im
        dt = torch.exp(log_dt)
        Lam_bar = torch.exp(dt * Lam)
        B_bar = ((Lam_bar - 1.0) / Lam)[:, None] * Bmat
        Bu = torch.einsum("bld,pd->blp", x + 0j, B_bar)
        h = torch.zeros_like(Bu[:, 0, :])
        hs = []
        for t in range(L):
            h = Lam_bar[None, :] * h + Bu[:, t, :]
            hs.append(h)
        hseq = torch.stack(hs, 1)
        y = 2.0 * torch.einsum("blp,dp->bld", hseq, Cmat).real + x * Dskip[None, None, :]
        return y

    x = A_u
    g = _sigmoid((x * gate_w).sum(-1, keepdims=True))
    a = _A_ref(x, A_log_A_real, A_A_imag, A_C_real, A_C_imag, A_log_dt, A_D_skip)
    b = _B_ref(x, B_Lambda_re, B_Lambda_im, B_B_re, B_B_im, B_C_re, B_C_im, B_log_dt, B_Dskip)
    return g * a + (1 - g) * b
```

```python
import re

def R(kind, b, n=1):
    return f"{kind}{b}" if n == 1 else f"{kind}[{b}:{b+n-1}]"
def V(b, n=1): return R("v", b, n)
def A(b, n=1): return R("a", b, n)
def S(b, n=1): return R("s", b, n)

_reg_re = re.compile(r"^-?(?:abs\()?\|?([vas])(?:(\d+)|\[(\d+):(\d+)\])\)?\|?$")
def regs_of(op):
    op = op.strip()
    if op == "vcc": return [("s", "vcc")]
    if op == "exec": return [("s", "exec")]
    if op in ("exec_lo", "exec_hi"): return [("s", "exec")]
    if op in ("vcc_lo", "vcc_hi"): return [("s", "vcc")]
    if op == "m0": return [("s", "m0")]
    m = _reg_re.match(op)
    if not m: return []
    k = m.group(1)
    if m.group(2) is not None: return [(k, int(m.group(2)))]
    return [(k, i) for i in range(int(m.group(3)), int(m.group(4)) + 1)]

TRANS = ("v_exp_f32", "v_log_f32", "v_rcp_f32", "v_rsq_f32", "v_sqrt_f32", "v_sin_f32", "v_cos_f32")

class Ins:
    def __init__(self, text, tag=None, opt=None):
        self.text = text.strip(); self.tag = tag; self.opt = opt
        t = self.text.split(";")[0].strip()
        parts = t.split(None, 1)
        self.op = parts[0]
        for suf in ("_e32", "_e64", "_dpp", "_sdwa"):
            if self.op.endswith(suf): self.opb = self.op[:-len(suf)]; break
        else: self.opb = self.op
        rest = parts[1] if len(parts) > 1 else ""
        ops = []; cur = ""; depth = 0
        for ch in rest:
            if ch in "[(": depth += 1
            if ch in "])": depth -= 1
            if ch == "," and depth == 0: ops.append(cur.strip()); cur = ""
            else: cur += ch
        if cur.strip(): ops.append(cur.strip())
        mods = ""
        if ops:
            sp = ops[-1].split(None, 1)
            ops[-1] = sp[0]; mods = sp[1] if len(sp) > 1 else ""
        self.ops = ops; self.mods = mods
        self.classify()
    def classify(self):
        o = self.opb; ops = self.ops
        self.w = []; self.r = []; self.kind = "other"; self.passes = 0
        self.srcC = []; self.srcAB = []; self.data = []
        self.dpp = ("quad_perm" in self.mods or "row_" in self.mods or "wave_" in self.mods)
        rl = lambda lst: [x for op in lst for x in regs_of(op)]
        if o.startswith("v_mfma"):
            self.kind = "mfma"
            self.w = regs_of(ops[0]); self.srcAB = rl(ops[1:3]); self.srcC = regs_of(ops[3])
            self.r = self.srcAB + self.srcC
            self.passes = 8 if "32x32x16" in o else 4
            assert "32x32x16_bf16" in o or "16x16x32_bf16" in o, o
        elif o.startswith("v_"):
            self.kind = "valu"
            if o.startswith("v_permlane") and "swap" in o or o == "v_swap_b32":
                self.w = rl(ops[:2]); self.r = rl(ops[:2])
            elif o in ("v_add_co_u32", "v_sub_co_u32", "v_subrev_co_u32", "v_addc_co_u32", "v_subb_co_u32"):
                self.w = rl(ops[:2]); self.r = rl(ops[2:])
            else:
                self.w = regs_of(ops[0]); self.r = rl(ops[1:])
                if o in ("v_fmac_f32", "v_dot2c_f32_bf16", "v_writelane_b32") or self.dpp: self.r += regs_of(ops[0])
                if o.startswith("v_cmpx"): self.w.append(("s", "exec"))
        elif o.startswith("ds_"):
            self.kind = "ds"
            if o.startswith("ds_read") or o.startswith("ds_bpermute") or o.startswith("ds_permute") or o.startswith("ds_swizzle"):
                self.w = regs_of(ops[0]); self.r = rl(ops[1:])
            else:
                self.r = rl(ops)
        elif o.startswith("buffer_") or o.startswith("global_"):
            self.kind = "vm"
            islds = re.search(r"\blds\b", self.mods) is not None
            if o.startswith("buffer_load"):
                if islds: self.r = rl(ops) + [("s", "m0")]; self.lds = True
                else:
                    self.w = regs_of(ops[0]); self.r = rl(ops[1:])
                    if "d16" in o: self.r += regs_of(ops[0])
            elif o.startswith("global_load"):
                self.w = regs_of(ops[0]); self.r = rl(ops[1:])
            elif o.startswith("buffer_store"):
                self.r = rl(ops); self.data = regs_of(ops[0])
            elif o.startswith("global_store"):
                self.r = rl(ops); self.data = regs_of(ops[1])
            elif o.startswith("buffer_atomic"):
                self.r = rl(ops)
                if "sc0" in self.mods: self.w = regs_of(ops[0])
            else:
                raise ValueError(o)
        elif o.startswith("s_load") or o in ("s_memtime", "s_memrealtime"):
            self.kind = "smem"
            self.w = regs_of(ops[0]); self.r = rl(ops[1:])
        elif o.startswith("s_"):
            self.kind = "salu"
            if o.startswith("s_cmp") or o.startswith("s_bitcmp"): self.r = rl(ops)
            elif o.startswith("s_cbranch") or o in ("s_branch", "s_barrier", "s_nop", "s_waitcnt", "s_endpgm", "s_sleep", "s_setprio"):
                if "vcc" in o: self.r = [("s", "vcc")]
                if "exec" in o: self.r = [("s", "exec")]
            else:
                self.w = regs_of(ops[0]); self.r = rl(ops[1:])
                if "saveexec" in o: self.w.append(("s", "exec")); self.r.append(("s", "exec"))
                if o in ("s_addk_i32", "s_mulk_i32"): self.r += regs_of(ops[0])
        else:
            raise ValueError("unknown instr " + self.text)
        self.ws = set(self.w); self.rs = set(self.r)
    def states(self):
        if self.opb == "s_nop": return int(self.ops[0], 0) + 1
        return 1

class Mark:
    def __init__(self, kind, arg=None, opt=None): self.kind = kind; self.arg = arg; self.opt = opt

def need_states(p, c):
    n = 0
    if p.kind == "valu":
        vw = {x for x in p.ws if x[0] != "s"}; sw = {x for x in p.ws if x[0] == "s"}
        if vw:
            if c.kind == "mfma" and vw & c.rs: n = max(n, 2)
            if c.kind == "valu" and vw & c.rs:
                if c.opb in ("v_readfirstlane_b32", "v_readlane_b32"): n = max(n, 1)
                if c.opb.startswith("v_permlane") or c.dpp: n = max(n, 2)
                if p.opb in TRANS: n = max(n, 1)
                if p.opb.startswith("v_dot"):
                    n = max(n, 0 if (c.opb == p.opb and vw & c.ws and not (vw & set(x for op in c.ops[1:3] for x in regs_of(op)))) else 3)
            if p.opb.startswith("v_dot") and c.kind == "valu" and c.opb != p.opb and vw & c.ws: n = max(n, 3)
            if p.opb.startswith("v_dot") and c.kind in ("vm", "ds") and vw & c.rs: n = max(n, 3)
            if p.opb in TRANS and c.kind in ("vm", "ds") and vw & c.rs: n = max(n, 1)
        if sw:
            if c.kind == "valu" and sw & c.rs: n = max(n, 4 if "lane" in c.opb else 2)
            if c.kind == "vm" and sw & c.rs: n = max(n, 5)
            if c.kind in ("salu", "smem") and sw & c.rs: n = max(n, 1)
            if ("s", "exec") in sw:
                if c.kind == "mfma": n = max(n, 4)
                if c.kind == "valu" and ("lane" in c.opb): n = max(n, 4)
                if c.kind == "valu" and c.dpp: n = max(n, 5)
    elif p.kind == "mfma":
        big = 12 if p.passes == 8 else 8
        if c.kind == "mfma":
            if p.ws & set(c.srcAB): n = max(n, big)
            if p.ws & set(c.srcC):
                if not (p.w == c.srcC and p.passes == c.passes): n = max(n, big - 2)
            elif p.ws & c.ws: n = max(n, big)
        elif c.kind in ("valu", "ds", "vm"):
            if p.ws & (c.rs | c.ws): n = max(n, big)
            if c.kind == "valu" and set(p.srcC) & c.ws: n = max(n, 7 if p.passes == 8 else 3)
            if c.kind in ("ds", "vm") and set(p.srcC) & c.ws: n = max(n, 7 if p.passes == 8 else 3)
    elif p.kind == "salu":
        if ("s", "m0") in p.ws and c.kind == "vm" and ("s", "m0") in c.rs: n = max(n, 1)
    elif p.kind == "vm":
        if len(p.data) >= 3 and set(p.data) & c.ws: n = max(n, 2)
    elif p.kind == "ds":
        pass
    return n

class Prog:
    def __init__(self):
        self.items = []; self.optstack = []; self.optn = 0
    def cur(self): return tuple(self.optstack)
    def __call__(self, text, tag=None):
        for l in text.strip("\n").split("\n"):
            l = l.strip()
            if not l or l.startswith(";"): continue
            if l.endswith(":"): self.items.append(Mark("label", l[:-1], self.cur()))
            elif l.startswith("."): self.items.append(Mark("dir", l))
            else: self.items.append(Ins(l, tag, self.cur()))
    def begin_opt(self): self.optn += 1; self.optstack.append(self.optn)
    def end_opt(self): self.optstack.pop()
    def wait_vm(self, tag=None): self.items.append(Mark("wait_vm", tag, self.cur()))
    def wait_lgkm(self, tag=None): self.items.append(Mark("wait_lgkm", tag, self.cur()))
    def clean(self, keep_vm=False):
        self.items.append(Mark("clean", keep_vm))
    def comment(self, s): self.items.append(Mark("dir", "; " + s))
    def finalize(self):
        out = []
        vm = []; lg = []
        hist = []
        def sure(op, cur):
            return op.opt == cur[:len(op.opt)]
        def emit_wait(nvm, nlg, cur):
            t = "s_waitcnt"
            if nvm is not None: t += f" vmcnt({min(nvm,63)})"
            if nlg is not None: t += f" lgkmcnt({min(nlg,15)})"
            i = Ins(t, None, cur); out.append(i); hist.append(i)
        def after(lst, idx, cur): return sum(1 for o in lst[idx+1:] if sure(o, cur))
        def retire(lst, idx, cur):
            for o in lst[:idx+1]: o.done.append(cur)
            while lst and any(len(d) == 0 or d == lst[0].opt[:len(d)] for d in lst[0].done): lst.pop(0)
        def isdone(o, cur): return any(d == cur[:len(d)] for d in o.done)
        for it in self.items:
            if isinstance(it, Mark):
                if it.kind in ("label", "dir"): out.append(it)
                elif it.kind == "clean":
                    if not it.arg: vm.clear()
                    lg.clear(); hist.clear()
                elif it.kind in ("wait_vm", "wait_lgkm"):
                    lst = vm if it.kind == "wait_vm" else lg
                    idx = -1
                    for k, o in enumerate(lst):
                        if (it.arg is None or o.tag == it.arg) and not isdone(o, it.opt): idx = k
                    if idx >= 0:
                        if lst is lg and any(o.kind == "smem" for o in lg): idx = len(lg) - 1
                        n = after(lst, idx, it.opt)
                        if lst is vm: emit_wait(n, None, it.opt)
                        else: emit_wait(None, n, it.opt)
                        retire(lst, idx, it.opt)
                continue
            c = it; cur = c.opt
            if c.opb == "s_waitcnt":
                m = re.search(r"vmcnt\((\d+)\)", c.text)
                if m and int(m.group(1)) == 0 and vm: retire(vm, len(vm) - 1, cur)
                m = re.search(r"lgkmcnt\((\d+)\)", c.text)
                if m and int(m.group(1)) == 0 and lg: retire(lg, len(lg) - 1, cur)
            touched = c.rs | c.ws
            nvm = nlg = None
            for lst in (vm, lg):
                idx = -1
                for k, o in enumerate(lst):
                    if o.ws & touched and not isdone(o, cur):
                        if not (o.ws & c.rs) and o.kind == c.kind and o.kind != "smem": continue
                        idx = k
                if idx >= 0:
                    if lst is lg and any(o.kind == "smem" for o in lg): idx = len(lg) - 1
                    n = after(lst, idx, cur)
                    if lst is vm: nvm = n
                    else: nlg = n
                    retire(lst, idx, cur)
            if nvm is not None or nlg is not None: emit_wait(nvm, nlg, cur)
            need = 0; dist = 0
            for p in reversed(hist[-64:]):
                n = need_states(p, c)
                if n:
                    d = 0
                    k = len(hist) - 1
                    while hist[k] is not p:
                        q = hist[k]
                        if sure(q, cur) or sure(q, p.opt): d += q.states()
                        k -= 1
                    need = max(need, n - d)
            if need > 0:
                i = Ins(f"s_nop {need-1}", None, cur); out.append(i); hist.append(i)
            out.append(c); hist.append(c)
            if c.kind == "vm": c.done = []; vm.append(c)
            elif c.kind in ("ds", "smem"): c.done = []; lg.append(c)
        lines = []
        for o in out:
            if isinstance(o, Ins): lines.append("  " + o.text)
            elif o.kind == "label": lines.append(o.arg + ":")
            else: lines.append(o.arg)
        return "\n".join(lines)

class Alloc:
    def __init__(self, start, limit): self.n = start; self.limit = limit; self.hi = start
    def __call__(self, n=1, align=None):
        if align is None: align = 1 if n == 1 else (2 if n < 4 else 4)
        b = (self.n + align - 1) // align * align
        self.n = b + n; self.hi = max(self.hi, self.n)
        assert self.n <= self.limit, "out of registers"
        return b
    def mark(self): return self.n
    def release(self, m): self.n = m
```

```python
import sys, math
sys.path.insert(0, "gen")
from asmgen import *

KN = "gated_mix__ssm_conv_s4d__ssm_conv_s5__prompt_kernel"
STAMPS = "--stamps" in sys.argv
OUTF = [a for a in sys.argv[1:] if not a.startswith("--")][0]
SPIN = 1 << 16

WS_AGG = 0
WS_HFL = 147456
WS_AFL = WS_HFL + 4096
WS_CLR = 163840
WS_GP = 0x30000
WS_H = 0x100000
WS_AT = 0x600000
WS_ST = 0x900000
WS_SIZE = 0x1000000

p = Prog()
sWG = 2
P_X, P_LOGA, P_AIM, P_ACRE, P_ACIM, P_ALDT, P_ADSK = 16, 18, 20, 22, 24, 26, 28
P_LRE, P_LIM, P_BRE, P_BIM, P_CRE, P_CIM, P_BLDT, P_BDSK = 32, 34, 36, 38, 40, 42, 44, 46
P_GW, P_OUT, P_DBG, P_WS = 48, 50, 52, 54
D_X, D_WS, D_BRE, D_BIM, D_CRE, D_CIM, D_OUT, D_AGG = 56, 60, 64, 68, 72, 76, 80, 84
sW, sXCD, sIDX = 3, 4, 5
sT0, sT1, sT2, sT3 = 6, 7, 8, 9
sCNT = 10
sRC64, sCT, sROT2 = 11, 12, 13
sKO, sM0 = 14, 15
sA, sB, sC, sDd, sE, sF = 88, 89, 90, 91, 92, 93
sNR = 94
sST = 96
sEX = 98
sEVEN = 100

va = Alloc(1, 256)
vLane = va()
vSTAMP = va(8) if STAMPS else None
nstamp = [0]
def stamp(i):
    if STAMPS:
        p(f"s_memrealtime {S(sST,2)}\ns_waitcnt lgkmcnt(0)\nv_mov_b32 {V(vSTAMP+i)}, {S(sST)}")
def dump_stamps():
    if STAMPS:
        m = va.mark(); t = va()
        p(f"""s_lshl_b32 {S(sT0)}, {S(sWG)}, 4
s_add_u32 {S(sT0)}, {S(sT0)}, {S(sW)}
s_lshl_b32 {S(sT0)}, {S(sT0)}, 5
s_add_u32 {S(sT0)}, {S(sT0)}, {WS_ST}
v_mov_b32 {V(t)}, 0
s_mov_b64 exec, 1
buffer_store_dwordx4 {V(vSTAMP,4)}, {V(t)}, {S(D_WS,4)}, {S(sT0)} offen
buffer_store_dwordx4 {V(vSTAMP+4,4)}, {V(t)}, {S(D_WS,4)}, {S(sT0)} offen offset:16
s_mov_b64 exec, -1""")
        va.release(m)

def srd(d, b, size):
    p(f"s_mov_b32 {S(d)}, {S(b)}\ns_and_b32 {S(d+1)}, {S(b+1)}, 0xffff\ns_mov_b32 {S(d+2)}, {size}\ns_mov_b32 {S(d+3)}, 0x20000")

def cmul(d, x, y, t):
    p(f"v_pk_mul_f32 {V(t,2)}, {V(x,2)}, {V(y,2)} op_sel_hi:[1,0]")
    p(f"v_pk_fma_f32 {V(d,2)}, {V(x,2)}, {V(y,2)}, {V(t,2)} op_sel:[1,1,0] op_sel_hi:[0,1,1] neg_lo:[1,0,0]")
def cfma(d, x, y, c):
    p(f"v_pk_fma_f32 {V(d,2)}, {V(x,2)}, {V(y,2)}, {V(c,2)} op_sel_hi:[1,0,1]")
    p(f"v_pk_fma_f32 {V(d,2)}, {V(x,2)}, {V(y,2)}, {V(d,2)} op_sel:[1,1,0] op_sel_hi:[0,1,1] neg_lo:[1,0,0]")
LOG2E = "0x3fb8aa3b"
INV2PI = "0.15915494"
def f32hex(x):
    import struct
    return "0x%08x" % struct.unpack("<I", struct.pack("<f", x))[0]
def cexp(d, er, ph, mult, t):
    if mult == 1:
        p(f"v_exp_f32 {V(t)}, {V(er)}\nv_fract_f32 {V(t+1)}, {V(ph)}")
    else:
        p(f"v_mul_f32 {V(t)}, {f32hex(mult)}, {V(er)}\nv_mul_f32 {V(t+1)}, {f32hex(mult)}, {V(ph)}\nv_exp_f32 {V(t)}, {V(t)}\nv_fract_f32 {V(t+1)}, {V(t+1)}")
    p(f"v_cos_f32 {V(d)}, {V(t+1)}\nv_sin_f32 {V(d+1)}, {V(t+1)}")
    p(f"v_pk_mul_f32 {V(d,2)}, {V(d,2)}, {V(t,2)} op_sel_hi:[1,0]")

lab = [0]
def newlab(s):
    lab[0] += 1; return f"L{s}{lab[0]}"

def check_cleared(vt):
    ok = newlab("clr_ok"); lp = newlab("clr_lp")
    m = va.mark(); o = va()
    p(f"v_cmp_eq_u32 vcc, 0, {V(vt)}\ns_cbranch_vccz {ok}")
    p.begin_opt()
    p(f"s_mov_b32 {S(sCNT)}, {SPIN}\nv_lshlrev_b32 {V(o)}, 2, {V(vLane)}\n{lp}:")
    p(f"global_load_dword {V(vt)}, {V(o)}, {S(P_DBG,2)} sc1\ns_waitcnt vmcnt(0)")
    p(f"v_cmp_eq_u32 vcc, 0, {V(vt)}\ns_cbranch_vccz {ok}\ns_sub_u32 {S(sCNT)}, {S(sCNT)}, 1\ns_cmp_lg_u32 {S(sCNT)}, 0\ns_cbranch_scc1 {lp}")
    p.end_opt()
    p(f"{ok}:")
    va.release(m)

p(f"""
s_cmp_ge_u32 {S(sWG)}, 256
s_cbranch_scc1 L_exit
s_load_dwordx16 s[16:31], s[0:1], 0
s_load_dwordx16 s[32:47], s[0:1], 64
s_load_dwordx8 s[48:55], s[0:1], 128
s_getpc_b64 {S(sT0,2)}
L_pc:
""")
m0_ = va.mark(); t = va(); t2 = va()
p(f"""
v_lshlrev_b32 {V(t)}, 7, v0
v_min_u32 {V(t)}, L_codeend-L_pc-4, {V(t)}
global_load_dword {V(t2)}, {V(t)}, {S(sT0,2)}
v_lshrrev_b32 {V(t)}, 6, v0
v_and_b32 {V(vLane)}, 63, v0
v_readfirstlane_b32 {S(sW)}, {V(t)}
s_and_b32 {S(sXCD)}, {S(sWG)}, 7
s_lshr_b32 {S(sIDX)}, {S(sWG)}, 3
""")
vPF = t2
if STAMPS:
    for i in range(8): p(f"v_mov_b32 {V(vSTAMP+i)}, 0")
p(f"""
s_mul_i32 {S(sT2)}, {S(sIDX)}, 43
s_lshr_b32 {S(sT2)}, {S(sT2)}, 8
s_mul_i32 {S(sT3)}, {S(sT2)}, 6
s_sub_u32 {S(sCT)}, {S(sIDX)}, {S(sT3)}
s_lshl_b32 {S(sRC64)}, {S(sXCD)}, 2
s_add_u32 {S(sRC64)}, {S(sRC64)}, {S(sT2)}
s_lshr_b32 {S(sROT2)}, {S(sCT)}, 1
s_add_u32 {S(sROT2)}, {S(sROT2)}, {S(sCT)}
s_lshl_b32 {S(sT2)}, {S(sT2)}, 1
s_add_u32 {S(sROT2)}, {S(sROT2)}, {S(sT2)}
s_cmp_ge_u32 {S(sROT2)}, 9
s_cselect_b32 {S(sT2)}, 9, 0
s_sub_u32 {S(sROT2)}, {S(sROT2)}, {S(sT2)}
""")
vSWZ = va(); vB = va()
p(f"""
s_and_b32 {S(sT2)}, {S(sW)}, 1
s_lshl_b32 {S(sT2)}, {S(sT2)}, 2
v_lshrrev_b32 {V(t)}, 4, {V(vLane)}
v_add_u32 {V(t)}, {S(sT2)}, {V(t)}
v_and_b32 {V(vSWZ)}, 7, {V(vLane)}
v_xor_b32 {V(vSWZ)}, {V(vSWZ)}, {V(t)}
v_lshlrev_b32 {V(vSWZ)}, 4, {V(vSWZ)}
v_lshrrev_b32 {V(t)}, 3, v0
v_mul_u32_u24 {V(vB)}, 1152, {V(t)}
v_add_u32 {V(vB)}, {V(vB)}, {V(vSWZ)}
s_waitcnt lgkmcnt(0)
""")
srd(D_X, P_X, 2359296); srd(D_WS, P_WS, WS_SIZE)
srd(D_BRE, P_BRE, 663552); srd(D_BIM, P_BIM, 663552)
srd(D_CRE, P_CRE, 663552); srd(D_CIM, P_CIM, 663552); srd(D_OUT, P_OUT, 4718592)
stamp(0)
p(f"s_cmp_ge_u32 {S(sIDX)}, 18\ns_cbranch_scc1 L_conv")
base_mark = va.mark()

def c_issue(i, slot):
    p(f"s_mul_i32 {S(sT0)}, {S(sCT)}, {96*1152}\ns_add_u32 {S(sT0)}, {S(sT0)}, {S(sKO)}")
    for k, d in enumerate((D_CRE, D_CIM)):
        for j in range(3):
            p(f"s_add_u32 m0, {S(sM0)}, {slot*32768 + k*12288 + j*4096}\ns_add_u32 {S(sT1)}, {S(sT0)}, {j*32*1152}")
            p(f"buffer_load_dwordx4 {V(vB)}, {S(d,4)}, {S(sT1)} offen lds", tag=f"c{i}")
    p(f"s_add_u32 {S(sKO)}, {S(sKO)}, 128\ns_cmp_ge_u32 {S(sKO)}, 1152\ns_cselect_b32 {S(sKO)}, 0, {S(sKO)}")
def c_addr_setup():
    r = va(4); m = va.mark(); a = va(); b = va()
    p(f"""
s_and_b32 {S(sT0)}, {S(sW)}, 1
s_mul_i32 {S(sT0)}, {S(sT0)}, {48*128}
s_lshr_b32 {S(sT1)}, {S(sW)}, 1
s_mul_i32 {S(sT1)}, {S(sT1)}, 12288
s_add_u32 {S(sT0)}, {S(sT0)}, {S(sT1)}
v_and_b32 {V(a)}, 15, {V(vLane)}
v_lshrrev_b32 {V(b)}, 1, {V(a)}
v_lshlrev_b32 {V(a)}, 7, {V(a)}
v_add_u32 {V(a)}, {S(sT0)}, {V(a)}
v_lshrrev_b32 {V(r)}, 4, {V(vLane)}
v_xor_b32 {V(b)}, {V(b)}, {V(r)}
v_lshl_add_u32 {V(r)}, {V(b)}, 4, {V(a)}
v_xor_b32 {V(r+1)}, 64, {V(r)}
v_add_u32 {V(r+2)}, 0x10000, {V(r)}
v_add_u32 {V(r+3)}, 0x10000, {V(r+1)}
""")
    va.release(m)
    return r
def c_read(i, slot, r):
    for s in range(2):
        for dj in range(3):
            p(f"ds_read_b128 {A(((i*2+s)*3+dj)*4,4)}, {V(r + (slot>>1)*2 + s)} offset:{(slot&1)*32768 + dj*2048}", tag=f"cr{i}")
def x_issue(slot):
    m = va.mark(); a = va(); b = va()
    p(f"s_mul_i32 {S(sT0)}, {S(sRC64)}, {64*1152}\ns_mul_i32 {S(sT1)}, {S(sCT)}, 192\ns_add_u32 {S(sT0)}, {S(sT0)}, {S(sT1)}")
    for j in range(3):
        p(f"""v_add_u32 {V(a)}, {256*j}, v0
v_mul_u32_u24 {V(b)}, 0x5556, {V(a)}
v_lshrrev_b32 {V(b)}, 18, {V(b)}
v_mul_u32_u24 {V(b)}, {1152-192}, {V(b)}
v_lshl_add_u32 {V(a)}, {V(a)}, 4, {V(b)}
s_add_u32 m0, {S(sM0)}, {slot*32768 + j*4096}""")
        p(f"buffer_load_dwordx4 {V(a)}, {S(D_X,4)}, {S(sT0)} offen lds", tag="xt")
    va.release(m)
vXT = va(12)
def x_read(slot):
    m = va.mark(); a = va(); b = va()
    p(f"""
s_and_b32 {S(sT0)}, {S(sW)}, 1
s_mul_i32 {S(sT0)}, {S(sT0)}, 96
s_lshr_b32 {S(sT1)}, {S(sW)}, 1
s_mul_i32 {S(sT1)}, {S(sT1)}, {32*192}
s_add_u32 {S(sT0)}, {S(sT0)}, {S(sT1)}
s_add_u32 {S(sT0)}, {S(sT0)}, {slot*32768}
v_and_b32 {V(a)}, 15, {V(vLane)}
v_mul_u32_u24 {V(a)}, 192, {V(a)}
v_lshrrev_b32 {V(b)}, 4, {V(vLane)}
v_lshl_add_u32 {V(a)}, {V(b)}, 3, {V(a)}
v_add_u32 {V(a)}, {S(sT0)}, {V(a)}
""")
    for tb in range(2):
        for dj in range(3):
            p(f"ds_read_b64 {V(vXT+(tb*3+dj)*2,2)}, {V(a)} offset:{tb*16*192 + dj*32}", tag="xr")
    va.release(m)
g2_mark = va.mark()

sRC, sPS = sA, sB
sXB, sBB = sC, sDd
p(f"""
s_cmp_ge_u32 {S(sIDX)}, 9
s_cselect_b32 {S(sT0)}, 1, 0
s_mul_i32 {S(sT1)}, {S(sT0)}, 9
s_sub_u32 {S(sPS)}, {S(sIDX)}, {S(sT1)}
s_lshl_b32 {S(sRC)}, {S(sXCD)}, 1
s_add_u32 {S(sRC)}, {S(sRC)}, {S(sT0)}
s_lshl_b32 {S(sT0)}, {S(sT0)}, 2
s_add_u32 {S(sKO)}, {S(sPS)}, {S(sT0)}
s_cmp_ge_u32 {S(sKO)}, 9
s_cselect_b32 {S(sT0)}, 9, 0
s_sub_u32 {S(sKO)}, {S(sKO)}, {S(sT0)}
s_lshl_b32 {S(sKO)}, {S(sKO)}, 7
s_mul_i32 {S(sXB)}, {S(sRC)}, 147456
s_mul_i32 {S(sBB)}, {S(sPS)}, 73728
s_lshl_b32 {S(sM0)}, {S(sW)}, 10
""")
vX = va(); m = va.mark(); a = va(); b = va()
p(f"""
v_bfe_u32 {V(a)}, {V(vLane)}, 5, 1
v_lshlrev_b32 {V(a)}, 5, {V(a)}
v_bfe_u32 {V(b)}, {V(vLane)}, 3, 1
v_lshl_add_u32 {V(a)}, {V(b)}, 4, {V(a)}
v_bfe_u32 {V(b)}, {V(vLane)}, 4, 1
v_add_u32 {V(a)}, {V(a)}, {V(b)}
s_lshl_b32 {S(sT0)}, {S(sW)}, 1
v_add_u32 {V(a)}, {S(sT0)}, {V(a)}
v_mul_u32_u24 {V(vX)}, 1152, {V(a)}
v_add_u32 {V(vX)}, {V(vX)}, {V(vSWZ)}
""")
va.release(m)
def g_issue_list(c):
    slot = c % 4; out = []
    def mk(d, vo, sb, so, lo, last):
        def f():
            p(f"s_add_u32 m0, {S(sM0)}, {slot*32768 + lo}\ns_add_u32 {S(sT1)}, {S(sb)}, {S(sKO)}")
            if so: p(f"s_add_u32 {S(sT1)}, {S(sT1)}, {so}")
            p(f"buffer_load_dwordx4 {V(vo)}, {S(d,4)}, {S(sT1)} offen lds", tag=f"g{c}")
            if last: p(f"s_add_u32 {S(sKO)}, {S(sKO)}, 128\ns_cmp_ge_u32 {S(sKO)}, 1152\ns_cselect_b32 {S(sKO)}, 0, {S(sKO)}")
        return f
    for i in range(4): out.append(mk(D_X, vX, sXB, (64*(i>>1) + 8*(i&1))*1152, i*4096, False))
    for i in range(2): out.append(mk(D_BRE, vB, sBB, i*32*1152, 16384 + i*4096, False))
    for i in range(2): out.append(mk(D_BIM, vB, sBB, i*32*1152, 24576 + i*4096, i == 1))
    return out
vGW = va(16); vP = va(3)
m = va.mark(); a = va(); b = va()
p(f"""
v_lshrrev_b32 {V(a)}, 5, {V(vLane)}
v_lshlrev_b32 {V(a)}, 4, {V(a)}
v_add_u32 {V(a)}, {S(sKO)}, {V(a)}
""")
for f in g_issue_list(0): f()
for s in range(4): p(f"global_load_dwordx4 {V(vGW+4*s,4)}, {V(a)}, {S(P_GW,2)} offset:{32*s}")
p(f"""
s_lshl_b32 {S(sT0)}, {S(sPS)}, 1
s_and_b32 {S(sT1)}, {S(sW)}, 1
s_add_u32 {S(sT0)}, {S(sT0)}, {S(sT1)}
s_lshl_b32 {S(sT0)}, {S(sT0)}, 6
v_and_b32 {V(b)}, 31, {V(vLane)}
v_lshl_add_u32 {V(b)}, {V(b)}, 1, {S(sT0)}
global_load_ushort {V(vP)}, {V(b)}, {S(P_LRE,2)}
global_load_ushort {V(vP+1)}, {V(b)}, {S(P_LIM,2)}
global_load_ushort {V(vP+2)}, {V(b)}, {S(P_BLDT,2)}
""")
va.release(m)
for c in (1, 2):
    for f in g_issue_list(c): f()
vRA = va(8); vRB = va(8)
m = va.mark(); a = va(); b = va()
p(f"""
v_and_b32 {V(a)}, 31, {V(vLane)}
v_bfe_u32 {V(b)}, {V(vLane)}, 1, 3
v_lshlrev_b32 {V(a)}, 7, {V(a)}
v_lshrrev_b32 {V(vRA)}, 5, {V(vLane)}
v_xor_b32 {V(b)}, {V(b)}, {V(vRA)}
v_lshl_add_u32 {V(a)}, {V(b)}, 4, {V(a)}
s_lshr_b32 {S(sT0)}, {S(sW)}, 1
s_lshl_b32 {S(sT0)}, {S(sT0)}, 13
s_and_b32 {S(sT1)}, {S(sW)}, 1
s_lshl_b32 {S(sT1)}, {S(sT1)}, 12
s_add_u32 {S(sT1)}, {S(sT1)}, 16384
""")
for s in range(4):
    p(f"v_xor_b32 {V(b)}, {32*s}, {V(a)}\nv_add_u32 {V(vRA+s)}, {S(sT0)}, {V(b)}\nv_add_u32 {V(vRB+s)}, {S(sT1)}, {V(b)}")
    p(f"v_add_u32 {V(vRA+4+s)}, 0x10000, {V(vRA+s)}\nv_add_u32 {V(vRB+4+s)}, 0x10000, {V(vRB+s)}")
va.release(m)
vCR = c_addr_setup()
vL, vL16, vL32, vL64, vL1k, vCo = va(2), va(2), va(2), va(2), va(2), va(2)
vMR, vMI = va(2), va(2)
m = va.mark(); tq = va(2); tr = va(2); er = va(); ph = va(); dtv = va()
p(f"""
v_lshlrev_b32 {V(vP)}, 16, {V(vP)}
v_lshlrev_b32 {V(vP+1)}, 16, {V(vP+1)}
v_lshlrev_b32 {V(vP+2)}, 16, {V(vP+2)}
v_mul_f32 {V(dtv)}, {LOG2E}, {V(vP+2)}
v_exp_f32 {V(dtv)}, {V(dtv)}
v_cvt_pk_bf16_f32 {V(dtv)}, 0, {V(dtv)}
v_mul_f32 {V(er)}, {V(dtv)}, {V(vP)}
v_mul_f32 {V(ph)}, {V(dtv)}, {V(vP+1)}
v_mul_f32 {V(er)}, {LOG2E}, {V(er)}
v_mul_f32 {V(ph)}, {INV2PI}, {V(ph)}
""")
cexp(vL, er, ph, 1, tq)
p(f"""
v_mul_f32 {V(er)}, {V(vP)}, {V(vP)}
v_fma_f32 {V(er)}, {V(vP+1)}, {V(vP+1)}, {V(er)}
v_rcp_f32 {V(er)}, {V(er)}
v_add_f32 {V(tq)}, -1.0, {V(vL)}
v_mov_b32 {V(tq+1)}, {V(vL+1)}
v_add_f32 {V(er)}, {V(er)}, {V(er)}
v_mul_f32 {V(tr)}, {V(vP)}, {V(er)}
v_mul_f32 {V(tr+1)}, -{V(vP+1)}, {V(er)}
""")
cmul(vCo, tq, tr, vCo)
cmul(tq, vL, vL, tq); cmul(tr, tq, tq, tr); cmul(tq, tr, tr, tq); cmul(vL16, tq, tq, vL16)
cmul(vL32, vL16, vL16, vL32); cmul(vL64, vL32, vL32, vL64)
cmul(tq, vL64, vL64, tq); cmul(tr, tq, tq, tr); cmul(tq, tr, tr, tq); cmul(vL1k, tq, tq, vL1k)
cmul(tq, vCo, vL32, tq)
p(f"""
v_cmp_gt_u32 vcc, 32, {V(vLane)}
v_cndmask_b32 {V(tq)}, {V(tq)}, {V(vCo)}, vcc
v_cndmask_b32 {V(tq+1)}, {V(tq+1)}, {V(vCo+1)}, vcc
""")
cmul(tr, tq, vL16, tr)
p(f"v_mov_b32 {V(vMR)}, {V(tq)}\nv_mov_b32 {V(vMR+1)}, {V(tr)}\nv_mov_b32 {V(vMI)}, {V(tq+1)}\nv_mov_b32 {V(vMI+1)}, {V(tr+1)}")
va.release(m)
p(f"""
s_lshl_b32 {S(sT0)}, {S(sPS)}, 1
s_and_b32 {S(sT1)}, {S(sW)}, 1
s_add_u32 {S(sT0)}, {S(sT0)}, {S(sT1)}
s_lshl_b32 {S(sT0)}, {S(sT0)}, 13
s_add_u32 {S(D_AGG)}, {S(P_WS)}, {S(sT0)}
s_addc_u32 {S(D_AGG+1)}, {S(P_WS+1)}, 0
s_and_b32 {S(D_AGG+1)}, {S(D_AGG+1)}, 0xffff
s_mov_b32 {S(D_AGG+2)}, 8192
s_mov_b32 {S(D_AGG+3)}, 0x20000
""")
vAcc = va(64, 4)
vF = va(64, 4)
vDBG = va(); vG0 = va(2)
def g_reads(c, s):
    slot = c % 4; hi = (slot >> 1) * 4; lo = (slot & 1) * 32768
    p(f"ds_read_b128 {V(vF+16*s,4)}, {V(vRA+hi+s)} offset:{lo}")
    p(f"ds_read_b128 {V(vF+16*s+8,4)}, {V(vRB+hi+s)} offset:{lo}")
    p(f"ds_read_b128 {V(vF+16*s+4,4)}, {V(vRA+hi+s)} offset:{lo+4096}")
    p(f"ds_read_b128 {V(vF+16*s+12,4)}, {V(vRB+hi+s)} offset:{lo+8192}")
def g_mfma(s, k, first):
    rb, im = k & 1, k >> 1
    d = vAcc + 16 * (2 * im + rb)
    p(f"v_mfma_f32_32x32x16_bf16 {V(d,16)}, {V(vF+16*s+4*rb,4)}, {V(vF+16*s+8+4*im,4)}, {'0' if first else V(d,16)}")
for c in range(9):
    p.wait_vm(f"g{c}"); p.wait_lgkm()
    p("s_barrier")
    if c == 0: stamp(1)
    if c + 3 < 9: iss = g_issue_list(c + 3)
    else:
        i = c + 3 - 9
        if i == 0: iss = [lambda: p(f"s_lshl_b32 {S(sKO)}, {S(sROT2)}, 7"), lambda: c_issue(0, 1)]
        else: iss = [lambda i=i: c_issue(i, (9 + i) % 4)]
    if c == 5:
        m = va.mark(); a = va()
        p(f"v_lshlrev_b32 {V(a)}, 2, {V(vLane)}\nglobal_load_dword {V(vDBG)}, {V(a)}, {S(P_DBG,2)} sc1")
        va.release(m)
    g_reads(c, 0); g_reads(c, 1)
    seq = []
    if c > 0: seq += [(3, k) for k in range(4)]
    seq += [("r", 2)] + [(0, k) for k in range(4)] + [("r", 3)] + [(1, k) for k in range(4)] + [(2, k) for k in range(4)]
    for e in seq:
        if e[0] == "r": g_reads(c, e[1])
        else:
            g_mfma(e[0], e[1], c == 0 and e[0] == 0)
            if iss: iss.pop(0)()
    if c == 0:
        p(f"v_mov_b32 {V(vG0)}, 0\nv_mov_b32 {V(vG0+1)}, 0")
        for s in range(4):
            for q in range(4):
                for rb in range(2):
                    p(f"v_dot2c_f32_bf16 {V(vG0+rb)}, {V(vF+16*s+4*rb+q)}, {V(vGW+4*s+q)}")
        m = va.mark(); a = va(); b = va()
        p(f"""v_permlane32_swap_b32 {V(vG0)}, {V(vG0+1)}
v_add_f32 {V(vG0)}, {V(vG0)}, {V(vG0+1)}
v_bfe_u32 {V(a)}, {V(vLane)}, 2, 1
v_lshlrev_b32 {V(a)}, 5, {V(a)}
v_and_b32 {V(b)}, 1, {V(vLane)}
v_lshl_add_u32 {V(a)}, {V(b)}, 4, {V(a)}
v_lshrrev_b32 {V(b)}, 3, {V(vLane)}
v_lshl_add_u32 {V(a)}, {V(b)}, 1, {V(a)}
v_bfe_u32 {V(b)}, {V(vLane)}, 1, 1
v_add_lshl_u32 {V(a)}, {V(a)}, {V(b)}, 2
s_mul_i32 {S(sT0)}, {S(sRC)}, 9
s_add_u32 {S(sT0)}, {S(sT0)}, {S(sPS)}
s_lshl_b32 {S(sT0)}, {S(sT0)}, 1
s_lshr_b32 {S(sT2)}, {S(sW)}, 1
s_add_u32 {S(sT0)}, {S(sT0)}, {S(sT2)}
s_lshl_b32 {S(sT0)}, {S(sT0)}, 8
s_add_u32 {S(sT0)}, {S(sT0)}, {WS_GP}
buffer_store_dword {V(vG0)}, {V(a)}, {S(D_WS,4)}, {S(sT0)} offen sc1""")
        va.release(m)
for k in range(4): g_mfma(3, k, False)
check_cleared(vDBG)
stamp(2)
def accR(s): return vAcc + 16 * (s >> 3) + 2 * (s & 7)
def accI(s): return vAcc + 32 + 16 * (s >> 3) + 2 * (s & 7)
def scan_step(dR, dI, hR, hI, bR, bI):
    p(f"v_pk_fma_f32 {V(dR,2)}, {V(hR,2)}, {V(vL,2)}, {V(bR,2)} op_sel_hi:[1,0,1]")
    p(f"v_pk_fma_f32 {V(dI,2)}, {V(hI,2)}, {V(vL,2)}, {V(bI,2)} op_sel_hi:[1,0,1]")
    p(f"v_pk_fma_f32 {V(dR,2)}, {V(hI,2)}, {V(vL,2)}, {V(dR,2)} op_sel:[0,1,0] neg_lo:[0,1,0] neg_hi:[0,1,0]")
    p(f"v_pk_fma_f32 {V(dI,2)}, {V(hR,2)}, {V(vL,2)}, {V(dI,2)} op_sel:[0,1,0]")
st = [(va(2), va(2)), (va(2), va(2))]
hR, hI = accR(0), accI(0)
for s in range(1, 16):
    dR, dI = st[s & 1]
    scan_step(dR, dI, hR, hI, accR(s), accI(s))
    hR, hI = dR, dI
vA0 = va(2); vH0 = va(2); vH1 = va(2); vAW = va(2); vLR = va(2); vLI = va(2)
vAO = va()
p(f"""
v_fma_f32 {V(vH0)}, {V(hR)}, {V(vL16)}, {V(hR+1)}
v_fma_f32 {V(vH0+1)}, {V(hI)}, {V(vL16)}, {V(hI+1)}
v_fma_f32 {V(vH0)}, -{V(hI)}, {V(vL16+1)}, {V(vH0)}
v_fma_f32 {V(vH0+1)}, {V(hR)}, {V(vL16+1)}, {V(vH0+1)}
v_mov_b32 {V(vH1)}, {V(vH0)}
v_mov_b32 {V(vH1+1)}, {V(vH0+1)}
v_and_b32 {V(vAO)}, 31, {V(vLane)}
v_lshlrev_b32 {V(vAO)}, 3, {V(vAO)}
v_permlane32_swap_b32 {V(vH0)}, {V(vH1)}
v_permlane32_swap_b32 {V(vH0+1)}, {V(vH1+1)}
s_lshl_b32 {S(sE)}, {S(sRC)}, 1
s_lshr_b32 {S(sT0)}, {S(sW)}, 1
s_add_u32 {S(sE)}, {S(sE)}, {S(sT0)}
s_lshl_b32 {S(sT0)}, {S(sE)}, 8
""")
sC64 = sE
cfma(vAW, vH0, vL32, vH1)
p(f"""
v_min_u32 {V(vAW)}, -2, {V(vAW)}
v_min_u32 {V(vAW+1)}, -2, {V(vAW+1)}
s_mov_b32 exec_hi, 0
buffer_store_dwordx2 {V(vAW,2)}, {V(vAO)}, {S(D_AGG,4)}, {S(sT0)} offen sc1
s_mov_b32 exec_hi, -1
""")
stamp(3)
p(f"""
v_mov_b32 {V(vA0)}, {V(hR)}
v_mov_b32 {V(vA0+1)}, {V(hI)}
v_cmp_gt_u32 vcc, 32, {V(vLane)}
v_cndmask_b32 {V(vH0)}, {V(vH0)}, 0, vcc
v_cndmask_b32 {V(vH0+1)}, {V(vH0+1)}, 0, vcc
""")
cfma(vA0, vH0, vL16, vA0)
cmul(vH1, vH0, vCo, vH1); cmul(vAW, vA0, vCo, vAW)
p(f"v_mov_b32 {V(vLR)}, {V(vH1)}\nv_mov_b32 {V(vLR+1)}, {V(vAW)}\nv_mov_b32 {V(vLI)}, {V(vH1+1)}\nv_mov_b32 {V(vLI+1)}, {V(vAW+1)}")
def bR(s): return vF + 16 * (s >> 3) + 2 * (s & 7)
def bI(s): return vF + 32 + 16 * (s >> 3) + 2 * (s & 7)
for s in range(16):
    p(f"v_pk_mul_f32 {V(bR(s),2)}, {V(accR(s),2)}, {V(vCo,2)} op_sel_hi:[1,0]")
    p(f"v_pk_mul_f32 {V(bI(s),2)}, {V(accI(s),2)}, {V(vCo,2)} op_sel_hi:[1,0]")
    p(f"v_pk_fma_f32 {V(bR(s),2)}, {V(accI(s),2)}, {V(vCo,2)}, {V(bR(s),2)} op_sel:[0,1,0] neg_lo:[0,1,0] neg_hi:[0,1,0]")
    p(f"v_pk_fma_f32 {V(bI(s),2)}, {V(accR(s),2)}, {V(vCo,2)}, {V(bI(s),2)} op_sel:[0,1,0]")
p.wait_vm("c2"); p("s_barrier")
for i in range(3): c_read(i, (9 + i) % 4, vCR)
p.wait_lgkm(); p("s_barrier")
vPO = va()
p(f"""
v_lshrrev_b32 {V(vPO)}, 5, {V(vLane)}
v_lshlrev_b32 {V(vPO)}, 12, {V(vPO)}
v_sub_u32 {V(vPO)}, {V(vAO)}, {V(vPO)}
s_lshl_b32 {S(sT0)}, {S(sC64)}, 8
v_add_u32 {V(vPO)}, {S(sT0)}, {V(vPO)}
""")
vPOs = vAcc + 32
for i in range(16): p(f"v_subrev_u32 {V(vPOs+i)}, {256*(i+1)}, {V(vPO)}\nv_min_u32 {V(vPOs+i)}, 0x10000, {V(vPOs+i)}")
def poll_loads(tag=None):
    for i in range(16): p(f"buffer_load_dwordx2 {V(vAcc+2*i,2)}, {V(vPOs+i)}, {S(D_AGG,4)}, 0 offen sc1", tag=tag)
def poll_check():
    p(f"v_max_u32 {V(vPO)}, {V(vAcc)}, {V(vAcc+1)}")
    for i in range(1, 16): p(f"v_max3_u32 {V(vPO)}, {V(vAcc+2*i)}, {V(vAcc+2*i+1)}, {V(vPO)}")
    p(f"v_cmp_eq_u32 vcc, -1, {V(vPO)}")
poll_loads("poll")
for i in range(3, 7): c_issue(i, (i - 3) % 4)
poll_check()
p("s_cbranch_vccz L_agg_ok")
p.begin_opt()
p(f"s_mov_b32 {S(sCNT)}, {SPIN}\nL_agg_lp:")
poll_loads(); p("s_waitcnt vmcnt(0)"); poll_check()
p(f"s_cbranch_vccz L_agg_ok\ns_sub_u32 {S(sCNT)}, {S(sCNT)}, 1\ns_cmp_lg_u32 {S(sCNT)}, 0\ns_cbranch_scc1 L_agg_lp")
p.end_opt()
p("L_agg_ok:")
stamp(4)
for i in range(14, -1, -1): cfma(vAcc + 2*i, vAcc + 2*i + 2, vL64, vAcc + 2*i)
p(f"""
v_mov_b32 {V(vH1)}, {V(vAcc)}
v_mov_b32 {V(vH1+1)}, {V(vAcc+1)}
v_permlane32_swap_b32 {V(vAcc)}, {V(vH1)}
v_permlane32_swap_b32 {V(vAcc+1)}, {V(vH1+1)}
""")
cfma(vAcc, vH1, vL1k, vAcc)
p(f"v_pk_fma_f32 {V(vLR,2)}, {V(vMR,2)}, {V(vAcc,2)}, {V(vLR,2)} op_sel_hi:[1,0,1]")
p(f"v_pk_fma_f32 {V(vLI,2)}, {V(vMI,2)}, {V(vAcc,2)}, {V(vLI,2)} op_sel_hi:[1,0,1]")
p(f"v_pk_fma_f32 {V(vLR,2)}, {V(vMI,2)}, {V(vAcc,2)}, {V(vLR,2)} op_sel:[0,1,0] neg_lo:[0,1,0] neg_hi:[0,1,0]")
p(f"v_pk_fma_f32 {V(vLI,2)}, {V(vMR,2)}, {V(vAcc,2)}, {V(vLI,2)} op_sel:[0,1,0]")
vHO = va(2)
p(f"""
v_lshlrev_b32 {V(vHO)}, 4, {V(vLane)}
v_xor_b32 {V(vHO+1)}, 64, {V(vHO)}
s_mul_i32 {S(sT0)}, {S(sC64)}, 147456
s_lshl_b32 {S(sT1)}, {S(sPS)}, 14
s_add_u32 {S(sT0)}, {S(sT0)}, {S(sT1)}
s_and_b32 {S(sT1)}, {S(sW)}, 1
s_lshl_b32 {S(sT1)}, {S(sT1)}, 12
s_add_u32 {S(sT0)}, {S(sT0)}, {S(sT1)}
s_add_u32 {S(sT0)}, {S(sT0)}, {WS_H}
s_add_u32 {S(sT1)}, {S(sT0)}, 8192
""")
hR, hI = vLR, vLI
for s in range(16):
    scan_step(bR(s), bI(s), hR, hI, bR(s), bI(s))
    hR, hI = bR(s), bI(s)
    if s & 7 == 7:
        rb = s >> 3
        for kh in range(2):
            for e in range(2):
                o = vAcc + 16 * rb + 8 * kh + 4 * e
                src = vF + 32 * kh + 16 * rb + e
                ng = "-" if kh else ""
                for mm in range(4):
                    p(f"v_cvt_pk_bf16_f32 {V(o+mm)}, {ng}{V(src+4*mm)}, {ng}{V(src+4*mm+2)}")
                p(f"buffer_store_dwordx4 {V(o,4)}, {V(vHO+rb)}, {S(D_WS,4)}, {S(sT0+kh)} offen offset:{(2*e+rb)*1024} sc1", tag="hst")
p.wait_vm("hst")
m = va.mark(); a = va(); b = va()
p(f"""
s_lshl_b32 {S(sT0)}, {S(sC64)}, 7
s_lshl_b32 {S(sT1)}, {S(sPS)}, 3
s_add_u32 {S(sT0)}, {S(sT0)}, {S(sT1)}
s_and_b32 {S(sT1)}, {S(sW)}, 1
s_lshl_b32 {S(sT1)}, {S(sT1)}, 2
s_add_u32 {S(sT0)}, {S(sT0)}, {S(sT1)}
s_add_u32 {S(sT0)}, {S(sT0)}, {WS_HFL}
v_mov_b32 {V(a)}, 0
v_mov_b32 {V(b)}, 1
s_mov_b64 exec, 1
buffer_store_dword {V(b)}, {V(a)}, {S(D_WS,4)}, {S(sT0)} offen sc1
s_mov_b64 exec, -1
""")
va.release(m)
stamp(5)
p("s_barrier")
for i in range(3, 7): c_read(i, (i - 3) % 4, vCR)
p.wait_lgkm(); p("s_barrier")
c_issue(7, 0); c_issue(8, 1); x_issue(2)
p.wait_vm(); p("s_barrier")
c_read(7, 0, vCR); c_read(8, 1, vCR); x_read(2)
p("s_waitcnt vmcnt(0) lgkmcnt(0)\ns_barrier")
g_hi = va.hi

p("L_gemm2:")
p.clean()
va.release(g2_mark)
vAc2 = va(48, 4); vHF = va(32, 4); vT = va(4); vFl = va(); vFo = va()
vGP = va(9); vDS = va(6); vAf = va(2); vAo = va()
p(f"""
v_min_u32 {V(vFo)}, 17, {V(vLane)}
v_lshlrev_b32 {V(vFo)}, 2, {V(vFo)}
s_lshl_b32 {S(sA)}, {S(sRC64)}, 7
s_add_u32 {S(sA)}, {S(sA)}, {WS_HFL}
buffer_load_dword {V(vFl)}, {V(vFo)}, {S(D_WS,4)}, {S(sA)} offen sc1
""")
m = va.mark(); a = va(); b = va(); c_ = va()
p(f"""
s_lshr_b32 {S(sB)}, {S(sW)}, 1
s_and_b32 {S(sC)}, {S(sW)}, 1
v_bfe_u32 {V(a)}, {V(vLane)}, 1, 1
v_lshrrev_b32 {V(b)}, 4, {V(vLane)}
v_lshlrev_b32 {V(b)}, 3, {V(b)}
v_bfe_u32 {V(c_)}, {V(vLane)}, 2, 2
v_add_u32 {V(b)}, {V(b)}, {V(c_)}
v_lshl_add_u32 {V(b)}, {V(a)}, 2, {V(b)}
v_lshlrev_b32 {V(b)}, 4, {V(b)}
v_lshl_add_u32 {V(b)}, {V(a)}, 10, {V(b)}
v_and_b32 {V(a)}, 1, {V(vLane)}
v_lshl_add_u32 {V(b)}, {V(a)}, 3, {V(b)}
s_mul_i32 {S(sT0)}, {S(sB)}, {8192+512}
v_add_u32 {V(vT)}, {S(sT0)}, {V(b)}
v_xor_b32 {V(vT+1)}, 64, {V(vT)}
v_xor_b32 {V(vT+2)}, 512, {V(vT)}
v_xor_b32 {V(vT+3)}, 512, {V(vT+1)}
""")
sKH, sNH = sB, sC
p(f"""
s_mul_i32 {S(sT0)}, {S(sCT)}, 192
s_mul_i32 {S(sT1)}, {S(sNH)}, 96
s_add_u32 {S(sT0)}, {S(sT0)}, {S(sT1)}
v_lshrrev_b32 {V(a)}, 4, {V(vLane)}
v_lshl_add_u32 {V(a)}, {V(a)}, 3, {S(sT0)}
""")
for dj in range(3): p(f"global_load_dwordx2 {V(vDS+2*dj,2)}, {V(a)}, {S(P_BDSK,2)} offset:{32*dj}")
va.release(m)
p(f"v_cmp_ne_u32 vcc, 1, {V(vFl)}\ns_cbranch_vccz L_hf_ok")
p.begin_opt()
p(f"""s_mov_b32 {S(sCNT)}, {SPIN}
L_hf_lp:
buffer_load_dword {V(vFl)}, {V(vFo)}, {S(D_WS,4)}, {S(sA)} offen sc1
s_waitcnt vmcnt(0)
v_cmp_ne_u32 vcc, 1, {V(vFl)}
s_cbranch_vccz L_hf_ok
s_sub_u32 {S(sCNT)}, {S(sCNT)}, 1
s_cmp_lg_u32 {S(sCNT)}, 0
s_cbranch_scc1 L_hf_lp""")
p.end_opt()
p("L_hf_ok:")
stamp(6)
p(f"""
v_lshlrev_b32 {V(vFo)}, 4, {V(vLane)}
s_mul_i32 {S(sT0)}, {S(sRC64)}, 147456
s_lshl_b32 {S(sM0)}, {S(sW)}, 12
s_add_u32 {S(sT0)}, {S(sT0)}, {S(sM0)}
s_add_u32 {S(sT0)}, {S(sT0)}, {WS_H}
s_lshl_b32 {S(sKO)}, {S(sROT2)}, 14
""")
for i in range(9):
    p(f"s_add_u32 m0, {S(sM0)}, {i*16384}\ns_add_u32 {S(sT1)}, {S(sT0)}, {S(sKO)}")
    for j in range(4):
        p(f"buffer_load_dwordx4 {V(vFo)}, {S(D_WS,4)}, {S(sT1)} offen offset:{j*1024} sc1 lds", tag=f"h{i}")
    p(f"s_add_u32 {S(sKO)}, {S(sKO)}, 16384\ns_cmp_ge_u32 {S(sKO)}, 147456\ns_cselect_b32 {S(sKO)}, 0, {S(sKO)}")
m = va.mark(); a = va()
p(f"""
s_lshr_b32 {S(sT0)}, {S(sRC64)}, 1
s_mul_i32 {S(sT0)}, {S(sT0)}, {9*512}
s_and_b32 {S(sT1)}, {S(sRC64)}, 1
s_lshl_b32 {S(sT1)}, {S(sT1)}, 8
s_add_u32 {S(sT0)}, {S(sT0)}, {S(sT1)}
s_add_u32 {S(sT0)}, {S(sT0)}, {WS_GP}
s_add_u32 {S(sT1)}, {S(sT0)}, 4096
v_lshlrev_b32 {V(a)}, 2, {V(vLane)}
""")
for i in range(9):
    p(f"buffer_load_dword {V(vGP+i)}, {V(a)}, {S(D_WS,4)}, {S(sT0 + (i>>3))} offen offset:{(i&7)*512} sc1")
va.release(m)
p(f"""
v_min_u32 {V(vAo)}, 47, {V(vLane)}
v_lshlrev_b32 {V(vAo)}, 3, {V(vAo)}
s_lshr_b32 {S(sA)}, {S(sRC64)}, 4
s_mul_i32 {S(sA)}, {S(sA)}, 2304
s_mul_i32 {S(sT1)}, {S(sCT)}, 384
s_add_u32 {S(sA)}, {S(sA)}, {S(sT1)}
s_add_u32 {S(sA)}, {S(sA)}, {WS_AFL}
""")
def h_reads(step):
    i, s = step >> 1, step & 1
    buf = vHF + 16 * (step & 1)
    for tb in range(4):
        hf, e = tb >> 1, tb & 1
        for hh in range(2):
            yield f"ds_read_b64_tr_b16 {V(buf+4*tb+2*hh,2)}, {V(vT+2*hf+hh)} offset:{(i&3)*16384 + s*4096 + e*2048}"
def chunk_sync(i):
    p.wait_vm(f"h{i}"); p("s_barrier")
    if i in (4, 8):
        for k in range(4): p(f"v_add_u32 {V(vT+k)}, 0x10000, {V(vT+k)}")
chunk_sync(0)
for r in h_reads(0): p(r)
for step in range(18):
    rd = []
    if step + 1 < 18:
        if (step + 1) & 1 == 0: chunk_sync((step + 1) >> 1)
        rd = list(h_reads(step + 1))
    if step == 12:
        p(f"buffer_load_dwordx2 {V(vAf,2)}, {V(vAo)}, {S(D_WS,4)}, {S(sA)} offen sc1")
    buf = vHF + 16 * (step & 1)
    for tb in range(4):
        for dj in range(3):
            d = vAc2 + (tb * 3 + dj) * 4
            p(f"v_mfma_f32_16x16x32_bf16 {V(d,4)}, {A((step*3+dj)*4,4)}, {V(buf+4*tb,4)}, {'0' if step == 0 else V(d,4)}")
            if rd: p(rd.pop(0))
p(f"v_max_u32 {V(vAf)}, {V(vAf)}, {V(vAf+1)}")
p(f"v_cmp_ne_u32 vcc, 1, {V(vAf)}\ns_cbranch_vccz L_af_ok")
p.begin_opt()
p(f"""s_mov_b32 {S(sCNT)}, {SPIN}
L_af_lp:
buffer_load_dwordx2 {V(vAf,2)}, {V(vAo)}, {S(D_WS,4)}, {S(sA)} offen sc1
s_waitcnt vmcnt(0)
v_max_u32 {V(vAf)}, {V(vAf)}, {V(vAf+1)}
v_cmp_ne_u32 vcc, 1, {V(vAf)}
s_cbranch_vccz L_af_ok
s_sub_u32 {S(sCNT)}, {S(sCNT)}, 1
s_cmp_lg_u32 {S(sCNT)}, 0
s_cbranch_scc1 L_af_lp""")
p.end_opt()
p("L_af_ok:")
LDS_AT = 147456
m = va.mark(); a = va(); b = va()
p(f"""
v_lshrrev_b32 {V(a)}, 3, v0
v_lshlrev_b32 {V(a)}, 12, {V(a)}
v_and_b32 {V(b)}, 7, {V(vLane)}
v_lshl_add_u32 {V(a)}, {V(b)}, 4, {V(a)}
s_mul_i32 {S(sT0)}, {S(sCT)}, {96*4096}
s_lshl_b32 {S(sT1)}, {S(sRC64)}, 7
s_add_u32 {S(sT0)}, {S(sT0)}, {S(sT1)}
s_add_u32 {S(sT0)}, {S(sT0)}, {WS_AT}
s_lshl_b32 {S(sM0)}, {S(sW)}, 10
""")
for j in range(3):
    p(f"s_add_u32 m0, {S(sM0)}, {LDS_AT + j*4096}\ns_add_u32 {S(sT1)}, {S(sT0)}, {j*32*4096}")
    p(f"buffer_load_dwordx4 {V(a)}, {S(D_WS,4)}, {S(sT1)} offen sc1 lds", tag="at")
va.release(m)
vG = va(4); vOG = va(4)
m = va.mark(); a = va(); b = va()
for i in range(1, 9): p(f"v_add_f32 {V(vGP)}, {V(vGP)}, {V(vGP+i)}")
p(f"""
v_cvt_pk_bf16_f32 {V(vGP)}, 0, {V(vGP)}
v_mul_f32 {V(vGP)}, 0xbfb8aa3b, {V(vGP)}
v_exp_f32 {V(vGP)}, {V(vGP)}
v_and_b32 {V(a)}, 15, {V(vLane)}
v_add_f32 {V(vGP)}, 1.0, {V(vGP)}
v_rcp_f32 {V(vGP)}, {V(vGP)}
s_lshl_b32 {S(sT0)}, {S(sKH)}, 5
v_add_lshl_u32 {V(a)}, {V(a)}, {S(sT0)}, 2
v_cvt_pk_bf16_f32 {V(vGP)}, 0, {V(vGP)}
v_xor_b32 {V(b)}, 128, {V(a)}
ds_bpermute_b32 {V(vG)}, {V(a)}, {V(vGP)}
ds_bpermute_b32 {V(vG+1)}, {V(a)}, {V(vGP)} offset:64
ds_bpermute_b32 {V(vG+2)}, {V(b)}, {V(vGP)}
ds_bpermute_b32 {V(vG+3)}, {V(b)}, {V(vGP)} offset:64
""")
va.release(m)
for tb in range(4):
    p(f"v_sub_f32 {V(vOG+tb)}, 1.0, {V(vG+tb)}\nv_cvt_pk_bf16_f32 {V(vOG+tb)}, 0, {V(vOG+tb)}")
def unpack(d, s):
    p(f"v_lshlrev_b32 {V(d)}, 16, {V(s)}\nv_and_b32 {V(d+1)}, 0xffff0000, {V(s)}")
vD = va(12, 2); vU = va(4, 2)
for k in range(6): unpack(vD + 2*k, vDS + k)
def bsel(r):
    return (r & ~1, r & 1)
for tb in range(2):
    for dj in range(3):
        d = vAc2 + (tb*3+dj)*4
        unpack(vU, vXT + (tb*3+dj)*2); unpack(vU+2, vXT + (tb*3+dj)*2 + 1)
        for k in range(2):
            p(f"v_pk_fma_f32 {V(d+2*k,2)}, {V(vU+2*k,2)}, {V(vD+4*dj+2*k,2)}, {V(d+2*k,2)}")
for tb in range(4):
    pr, sel = bsel(vOG + tb)
    for dj in range(3):
        d = vAc2 + (tb*3+dj)*4
        for k in range(2):
            p(f"v_pk_mul_f32 {V(d+2*k,2)}, {V(d+2*k,2)}, {V(pr,2)} op_sel:[0,{sel}] op_sel_hi:[1,{sel}]")
RS = 400
vWA = va(2); vAA = va(); vRD = va(6); vGO = va(6)
m = va.mark(); a = va(); b = va()
p(f"""
v_and_b32 {V(a)}, 15, {V(vLane)}
v_mul_u32_u24 {V(a)}, {RS}, {V(a)}
v_lshrrev_b32 {V(b)}, 4, {V(vLane)}
v_lshl_add_u32 {V(a)}, {V(b)}, 4, {V(a)}
s_mul_i32 {S(sT0)}, {S(sKH)}, {64*RS + 32*RS}
s_mul_i32 {S(sT1)}, {S(sNH)}, 192
s_add_u32 {S(sT0)}, {S(sT0)}, {S(sT1)}
v_add_u32 {V(vWA)}, {S(sT0)}, {V(a)}
s_mul_i32 {S(sT0)}, {S(sKH)}, {64*RS - 32*RS}
s_add_u32 {S(sT0)}, {S(sT0)}, {S(sT1)}
s_add_u32 {S(sT0)}, {S(sT0)}, {32*RS}
v_add_u32 {V(vWA+1)}, {S(sT0)}, {V(a)}
v_lshrrev_b32 {V(a)}, 2, {V(vLane)}
v_lshlrev_b32 {V(a)}, 7, {V(a)}
v_and_b32 {V(b)}, 3, {V(vLane)}
v_lshl_add_u32 {V(a)}, {V(b)}, 3, {V(a)}
s_mul_i32 {S(sT0)}, {S(sNH)}, {48*128}
s_lshl_b32 {S(sT1)}, {S(sKH)}, 6
s_add_u32 {S(sT0)}, {S(sT0)}, {S(sT1)}
s_add_u32 {S(sT0)}, {S(sT0)}, {LDS_AT}
v_add_u32 {V(vAA)}, {S(sT0)}, {V(a)}
s_mul_i32 {S(sT0)}, {S(sW)}, {16*RS}
""")
for i in range(6):
    p(f"""v_add_u32 {V(a)}, {64*i}, {V(vLane)}
v_mul_u32_u24 {V(b)}, 0xaab, {V(a)}
v_lshrrev_b32 {V(b)}, 16, {V(b)}
v_lshlrev_b32 {V(a)}, 4, {V(a)}
v_lshl_add_u32 {V(vRD+i)}, {V(b)}, 4, {V(a)}
v_add_u32 {V(vRD+i)}, {S(sT0)}, {V(vRD+i)}
v_mul_u32_u24 {V(b)}, {2304-384}, {V(b)}
v_add_u32 {V(vGO+i)}, {V(a)}, {V(b)}""")
va.release(m)
p.wait_vm("at"); p.wait_lgkm(); p("s_barrier")
vAT = vHF
for tb in range(2):
    for dj in range(3):
        p(f"ds_read_b64_tr_b16 {V(vAT+(tb*3+dj)*2,2)}, {V(vAA)} offset:{dj*2048 + tb*32}")
for tb in (2, 3):
    for dj in range(3):
        p(f"ds_write_b128 {V(vWA+1)}, {V(vAc2+(tb*3+dj)*4,4)} offset:{(tb&1)*16*RS + dj*64}")
for tb in range(2):
    pr, sel = bsel(vG + tb)
    for dj in range(3):
        d = vAc2 + (tb*3+dj)*4
        unpack(vU, vAT + (tb*3+dj)*2); unpack(vU+2, vAT + (tb*3+dj)*2 + 1)
        for k in range(2):
            p(f"v_pk_fma_f32 {V(d+2*k,2)}, {V(vU+2*k,2)}, {V(pr,2)}, {V(d+2*k,2)} op_sel:[0,{sel},0] op_sel_hi:[1,{sel},1]")
        p(f"ds_write_b128 {V(vWA)}, {V(d,4)} offset:{tb*16*RS + dj*64}")
p(f"""
s_lshl_b32 {S(sT0)}, {S(sRC64)}, 2
s_add_u32 {S(sT0)}, {S(sT0)}, {S(sW)}
s_mul_i32 {S(sT0)}, {S(sT0)}, {16*2304}
s_mul_i32 {S(sT1)}, {S(sCT)}, 384
s_add_u32 {S(sT0)}, {S(sT0)}, {S(sT1)}
""")
p.wait_lgkm(); p("s_barrier")
for i in range(6):
    p(f"ds_read_b128 {V(vAc2+8*i,4)}, {V(vRD+i)}\nds_read_b128 {V(vAc2+8*i+4,4)}, {V(vRD+i)} offset:{64*RS}")
for i in range(6):
    d = vAc2 + 8*i
    p(f"v_pk_add_f32 {V(d,2)}, {V(d,2)}, {V(d+4,2)}\nv_pk_add_f32 {V(d+2,2)}, {V(d+2,2)}, {V(d+6,2)}")
    p(f"buffer_store_dwordx4 {V(d,4)}, {V(vGO+i)}, {S(D_OUT,4)}, {S(sT0)} offen")
if STAMPS: p("s_waitcnt vmcnt(0)")
stamp(7)
dump_stamps()
p("L_exit:\ns_endpgm")

p("L_conv:")
p.clean(keep_vm=False)
va.release(g2_mark)
L_U, L_KX, L_SCR, L_XCH = 0, 27648, 77568, 147200
sD0, sPI, sNHc = sA, sB, sC
p(f"""
s_mul_i32 {S(sD0)}, {S(sXCD)}, 72
s_cmp_ge_u32 {S(sIDX)}, 24
s_cselect_b32 {S(sNR)}, 3, 2
s_cselect_b32 {S(sT0)}, 6, 4
s_cselect_b32 {S(sT1)}, 144, 24
s_mul_i32 {S(sT0)}, {S(sT0)}, {S(sIDX)}
s_sub_u32 {S(sT0)}, {S(sT0)}, {S(sT1)}
s_add_u32 {S(sD0)}, {S(sD0)}, {S(sT0)}
s_lshr_b32 {S(sPI)}, {S(sW)}, 1
s_and_b32 {S(sNHc)}, {S(sW)}, 1
""")
vPR = va(18)
vXR = va(32, 4)
m = va.mark(); a = va(); b = va(); z4 = va(4)
for r in range(3):
    p(f"""s_add_u32 {S(sT0)}, {S(sD0)}, {S(sPI)}
s_add_u32 {S(sT0)}, {S(sT0)}, {2*r}
s_min_u32 {S(sT0)}, {S(sT0)}, 575
s_lshl_b32 {S(sT1)}, {S(sT0)}, 1
v_mov_b32 {V(b)}, {S(sT1)}
s_add_u32 {S(sT1)}, {S(sT1)}, {S(sNHc)}
s_lshl_b32 {S(sT1)}, {S(sT1)}, 7
v_lshl_add_u32 {V(a)}, {V(vLane)}, 1, {S(sT1)}""")
    for k, ptr in enumerate((P_LOGA, P_AIM, P_ACRE, P_ACIM)):
        p(f"global_load_ushort {V(vPR+6*r+k)}, {V(a)}, {S(ptr,2)}", tag="par")
    p(f"global_load_ushort {V(vPR+6*r+4)}, {V(b)}, {S(P_ALDT,2)}", tag="par")
    p(f"global_load_ushort {V(vPR+6*r+5)}, {V(b)}, {S(P_ADSK,2)}", tag="par")
p(f"s_cmp_lt_u32 {S(sIDX)}, 24\ns_cbranch_scc1 L_noclr")
p.begin_opt()
p(f"""
s_sub_u32 {S(sF)}, {S(sWG)}, 192
s_mul_i32 {S(sT0)}, {S(sF)}, 2560
v_min_u32 {V(a)}, 159, v0
v_lshlrev_b32 {V(a)}, 4, {V(a)}
v_mov_b32 {V(z4)}, -1
v_mov_b32 {V(z4+1)}, -1
v_mov_b32 {V(z4+2)}, -1
v_mov_b32 {V(z4+3)}, -1
""")
p(f"buffer_store_dwordx4 {V(z4,4)}, {V(a)}, {S(D_WS,4)}, {S(sT0)} offen sc1", tag="clr")
p.end_opt()
p("L_noclr:")
p(f"""
v_mul_u32_u24 {V(a)}, {8*1152}, v0
s_lshl_b32 {S(sT0)}, {S(sD0)}, 1
s_add_u32 {S(sT1)}, {S(sT0)}, 4608
""")
for i in range(8):
    p(f"buffer_load_dwordx3 {V(vXR+4*i,3)}, {V(a)}, {S(D_X,4)}, {S(sT0+(i>>2))} offen offset:{(i&3)*1152}", tag="xr")
p(f"""
v_mov_b32 {V(z4)}, 0
v_mov_b32 {V(z4+1)}, 0
v_mov_b32 {V(z4+2)}, 0
v_mov_b32 {V(z4+3)}, 0
v_min_u32 {V(a)}, 191, v0
v_lshrrev_b32 {V(b)}, 5, {V(a)}
v_lshlrev_b32 {V(b)}, 12, {V(b)}
v_lshl_add_u32 {V(a)}, {V(a)}, 4, {V(b)}
ds_write_b128 {V(a)}, {V(z4,4)} offset:{L_U}
v_min_u32 {V(a)}, 23, v0
v_lshrrev_b32 {V(b)}, 1, {V(a)}
v_mul_u32_u24 {V(b)}, 4160, {V(b)}
v_and_b32 {V(a)}, 1, {V(a)}
v_lshl_add_u32 {V(a)}, {V(a)}, 4, {V(b)}
ds_write_b128 {V(a)}, {V(z4,4)} offset:{L_KX}
""")
va.release(m)
vSW = va(); vSR = va(); vXW = va(); vXRd = va(); vKE = va(3)
m = va.mark(); a = va(); b = va()
p(f"""
s_mul_i32 {S(sT0)}, {S(sW)}, 17408
s_add_u32 {S(sT0)}, {S(sT0)}, {L_SCR}
v_lshl_add_u32 {V(vSW)}, {V(vLane)}, 2, {S(sT0)}
v_and_b32 {V(a)}, 31, {V(vLane)}
v_mul_u32_u24 {V(vSR)}, 272, {V(a)}
v_lshrrev_b32 {V(b)}, 5, {V(vLane)}
v_lshl_add_u32 {V(vSR)}, {V(b)}, 4, {V(vSR)}
v_add_u32 {V(vSR)}, {S(sT0)}, {V(vSR)}
s_lshl_b32 {S(sT0)}, {S(sW)}, 12
s_add_u32 {S(sT1)}, {S(sT0)}, {L_XCH}
v_lshl_add_u32 {V(vXW)}, {V(vLane)}, 4, {S(sT1)}
s_xor_b32 {S(sT0)}, {S(sT0)}, 4096
s_add_u32 {S(sT1)}, {S(sT0)}, {L_XCH}
v_lshl_add_u32 {V(vXRd)}, {V(vLane)}, 4, {S(sT1)}
s_mul_i32 {S(sT0)}, {S(sW)}, 4160
s_add_u32 {S(sT0)}, {S(sT0)}, {L_KX + 32}
v_lshl_add_u32 {V(a)}, {V(a)}, 4, {S(sT0)}
v_lshl_add_u32 {V(vKE)}, {V(b)}, 3, {V(a)}
v_lshl_add_u32 {V(vKE+1)}, {V(b)}, 9, {V(a)}
v_lshl_add_u32 {V(vKE+2)}, {V(b)}, 10, {V(a)}
s_mov_b32 {S(sEVEN)}, 0x55555555
s_mov_b32 {S(sEVEN+1)}, 0x55555555
""")
va.release(m)
p.wait_vm("par")
for k in range(18): p(f"v_lshlrev_b32 {V(vPR+k)}, 16, {V(vPR+k)}")
vDSK = va(3)
for r in range(3): p(f"v_mov_b32 {V(vDSK+r)}, {V(vPR+6*r+5)}")
p(f"s_cmp_lt_u32 {S(sIDX)}, 24\ns_cbranch_scc1 L_noclr2")
p.begin_opt()
p.wait_vm("clr")
m = va.mark(); a = va(); b = va()
p(f"""s_barrier
s_cmp_lg_u32 {S(sW)}, 0
s_cbranch_scc1 L_noclr2
s_lshl_b32 {S(sT0)}, {S(sF)}, 2
v_mov_b32 {V(a)}, {S(sT0)}
v_mov_b32 {V(b)}, 1
s_mov_b64 exec, 1
global_store_dword {V(a)}, {V(b)}, {S(P_DBG,2)} sc1
s_mov_b64 exec, -1""")
va.release(m)
p.end_opt()
p("L_noclr2:")
stamp(1)
km = va.mark()
p(f"s_mov_b32 {S(sE)}, {S(sNR)}")
p.wait_lgkm()
p("L_kgen:")
dtv = va(); er = va(); ph = va(); tq = va(2); vw = va(2); vW8 = va(2); vV = va(2)
Fv = [va(2) for _ in range(9)]; Gv = [va(2) for _ in range(5)]; Ev = [va(2) for _ in range(2)]
pk = [va() for _ in range(4)]; pki = [0]
p(f"""
v_mul_f32 {V(dtv)}, {LOG2E}, {V(vPR+4)}
v_mul_f32 {V(er)}, {LOG2E}, {V(vPR)}
v_exp_f32 {V(dtv)}, {V(dtv)}
v_exp_f32 {V(er)}, {V(er)}
v_cvt_pk_bf16_f32 {V(dtv)}, 0, {V(dtv)}
v_cvt_pk_bf16_f32 {V(er)}, 0, {V(er)}
v_mul_f32 {V(ph)}, {V(dtv)}, {V(vPR+1)}
v_mul_f32 {V(er)}, {V(dtv)}, {V(er)}
v_mul_f32 {V(ph)}, {INV2PI}, {V(ph)}
v_mul_f32 {V(er)}, 0xbfb8aa3b, {V(er)}
v_add_f32 {V(dtv)}, {V(dtv)}, {V(dtv)}
v_mul_f32 {V(Fv[0])}, {V(dtv)}, {V(vPR+2)}
v_mul_f32 {V(Fv[0]+1)}, {V(dtv)}, {V(vPR+3)}
""")
cexp(vw, er, ph, 1, tq); cexp(vW8, er, ph, 8, tq); cexp(vV, er, ph, 256, tq)
def arow(v, hf): return 8 * (v >> 2) + 4 * hf + (v & 3)
def emit_a(x, rows):
    r = pk[pki[0] % 4]; pki[0] += 1
    p(f"v_cvt_pk_bf16_f32 {V(r)}, {V(x)}, -{V(x+1)}")
    for row in rows: p(f"ds_write_b32 {V(vSW)}, {V(r)} offset:{row*272}")
def emit_b(x, bq):
    r = pk[pki[0] % 4]; pki[0] += 1
    if x is None: p(f"v_mov_b32 {V(r)}, 0x3f80")
    else: p(f"v_cvt_pk_bf16_f32 {V(r)}, {V(x)}, {V(x+1)}")
    p(f"ds_write_b32 {V(vSW)}, {V(r)} offset:{(32+bq)*272}")
def near_rows(a_): return ([arow(a_, 0)] if a_ <= 4 else []) + ([arow(a_ - 4, 1)] if a_ >= 4 else [])
emit_a(Fv[0], near_rows(0))
for a_ in range(1, 9):
    cmul(Fv[a_], Fv[a_-1], vw, Fv[a_]); emit_a(Fv[a_], near_rows(a_))
for k in range(5):
    cmul(Gv[k], Fv[2*k], vV, Gv[k])
    emit_a(Gv[k], ([arow(5+k, 0)] if k <= 2 else []) + ([arow(5+k-2, 1)] if k >= 2 else []))
cur = [Gv[0], Gv[2], Gv[4]]; oth = [Fv[0], Fv[1], Fv[2]]
for j in range(2):
    for k in range(3):
        cmul(oth[k], cur[k], vV, oth[k]); emit_a(oth[k], [arow(8+k, j)])
    cur, oth = oth, cur
cur = [cur[0], cur[2]]; oth = [oth[0], oth[2]]
for j in range(4):
    for k in range(2):
        cmul(oth[k], cur[k], vV, oth[k]); emit_a(oth[k], [arow(11 + 2*(j&1) + k, j >> 1)])
    cur, oth = oth, cur
emit_b(None, 0); emit_b(vW8, 1)
prev = vW8
for bq in range(2, 32):
    d = Ev[bq & 1]; cmul(d, prev, vW8, d); emit_b(d, bq); prev = d
vKF = va(64, 4); vKD = va(16, 4); vKP = va(16, 4)
p.wait_lgkm()
for s in range(8):
    p(f"ds_read_b128 {V(vKF+8*s,4)}, {V(vSR)} offset:{32*s}\nds_read_b128 {V(vKF+8*s+4,4)}, {V(vSR)} offset:{32*272 + 32*s}")
for s in range(8):
    p(f"v_mfma_f32_32x32x16_bf16 {V(vKD,16)}, {V(vKF+8*s,4)}, {V(vKF+8*s+4,4)}, {'0' if s == 0 else V(vKD,16)}")
for k in range(10):
    kk = k + k // 5
    p(f"v_mov_b32 {V(vPR+kk)}, {V(vPR+kk+6)}")
p("s_barrier")
for q in range(4): p(f"ds_write_b128 {V(vXW)}, {V(vKD+4*q,4)} offset:{1024*q}")
p.wait_lgkm(); p("s_barrier")
for q in range(4): p(f"ds_read_b128 {V(vKP+4*q,4)}, {V(vXRd)} offset:{1024*q}")
for q in range(8): p(f"v_pk_add_f32 {V(vKD+2*q,2)}, {V(vKD+2*q,2)}, {V(vKP+2*q,2)}")
K = lambda v: V(vKD + v)
O = vKF
tie = [vKP, vKP + 1]
for j in range(2): p(f"v_cndmask_b32 {V(tie[j])}, {K(12+2*j)}, {K(11+2*j)}, {S(sEVEN,2)}")
def cv(d, x, y): p(f"v_cvt_pk_bf16_f32 {V(d)}, {x}, {y}")
p(f"s_cmp_lg_u32 {S(sNHc)}, 0\ns_cbranch_scc1 L_kodd")
p.begin_opt()
cv(O, K(0), K(1)); cv(O+1, K(2), K(3)); cv(O+2, K(5), K(5)); cv(O+3, K(6), K(7))
cv(O+4, K(8), K(8)); cv(O+5, K(8), K(9)); cv(O+6, K(9), K(9)); cv(O+7, K(10), K(10))
for j in range(2):
    lo, hi = K(11+2*j), K(12+2*j)
    cv(O+8+4*j, lo, lo); cv(O+9+4*j, lo, lo); cv(O+10+4*j, V(tie[j]), hi); cv(O+11+4*j, hi, hi)
p("s_branch L_kwr")
p.end_opt()
p("L_kodd:")
p.begin_opt()
cv(O, K(1), K(2)); cv(O+1, K(3), K(4)); cv(O+2, K(5), K(6)); cv(O+3, K(7), K(7))
cv(O+4, K(8), K(8)); cv(O+5, K(9), K(9)); cv(O+6, K(9), K(10)); cv(O+7, K(10), K(10))
for j in range(2):
    lo, hi = K(11+2*j), K(12+2*j)
    cv(O+8+4*j, lo, lo); cv(O+9+4*j, lo, V(tie[j])); cv(O+10+4*j, hi, hi); cv(O+11+4*j, hi, hi)
cv(O+16, "0", K(0))
p(f"v_add_u32 {V(O+17)}, -4, {V(vKE)}\ns_mov_b64 exec, 1\nds_write_b32 {V(O+17)}, {V(O+16)}\ns_mov_b64 exec, -1")
p.end_opt()
p("L_kwr:")
p(f"""
ds_write_b64 {V(vKE)}, {V(O,2)}
ds_write_b64 {V(vKE)}, {V(O+2,2)} offset:512
ds_write_b128 {V(vKE+1)}, {V(O+4,4)} offset:1024
ds_write_b128 {V(vKE+2)}, {V(O+8,4)} offset:2048
ds_write_b128 {V(vKE+2)}, {V(O+12,4)} offset:2560
""")
for k in range(3): p(f"v_add_u32 {V(vKE+k)}, {2*8320}, {V(vKE+k)}")
p(f"s_sub_u32 {S(sE)}, {S(sE)}, 1\ns_cmp_lg_u32 {S(sE)}, 0\ns_waitcnt lgkmcnt(0)\ns_cbranch_scc1 L_kgen")
stamp(2)
va.release(km)
m = va.mark(); a = va(); gq = va(8, 4)
p(f"""v_lshlrev_b32 {V(a)}, 4, v0
s_mov_b32 {S(sT0)}, 0x05040100
s_mov_b32 {S(sT1)}, 0x07060302""")
for c in range(6):
    o = gq + 4 * (c & 1)
    for k in range(4):
        p(f"v_perm_b32 {V(o+k)}, {V(vXR+4*(6-2*k)+(c>>1))}, {V(vXR+4*(7-2*k)+(c>>1))}, {S(sT0+(c&1))}")
    p(f"ds_write_b128 {V(a)}, {V(o,4)} offset:{L_U + c*4608 + 512}")
va.release(m)
vCA = va(4); vCB = va(); vUE = va(); vTW = va(); vTR = va()
m = va.mark(); a = va(); b = va(); c_ = va()
p(f"""
v_and_b32 {V(a)}, 15, {V(vLane)}
v_lshrrev_b32 {V(b)}, 4, {V(vLane)}
v_add_u32 {V(c_)}, 1, {V(a)}
v_lshrrev_b32 {V(c_)}, 1, {V(c_)}
v_lshl_add_u32 {V(c_)}, {V(b)}, 2, {V(c_)}
v_lshlrev_b32 {V(c_)}, 2, {V(c_)}
v_add_u32 {V(vCA)}, 4160, {V(c_)}
v_cndmask_b32 {V(c_)}, {V(c_)}, {V(vCA)}, {S(sEVEN,2)}
s_mul_i32 {S(sT0)}, {S(sPI)}, 8320
s_lshl_b32 {S(sT1)}, {S(sNHc)}, 8
s_add_u32 {S(sT0)}, {S(sT0)}, {S(sT1)}
s_add_u32 {S(sT0)}, {S(sT0)}, {L_KX}
v_add_u32 {V(vCA)}, {S(sT0)}, {V(c_)}
v_add_u32 {V(vCA+1)}, 1024, {V(vCA)}
v_add_u32 {V(vCA+2)}, 2048, {V(vCA)}
v_add_u32 {V(vCA+3)}, 3072, {V(vCA)}
s_mul_i32 {S(sT0)}, {S(sPI)}, 4608
s_sub_u32 {S(sT0)}, {S(sT0)}, {S(sT1)}
s_add_u32 {S(sT0)}, {S(sT0)}, {L_U + 512 + 16 - 192}
v_lshlrev_b32 {V(c_)}, 1, {V(a)}
v_sub_u32 {V(c_)}, {V(c_)}, {V(b)}
v_lshl_add_u32 {V(vCB)}, {V(c_)}, 4, {S(sT0)}
s_mul_i32 {S(sT0)}, {S(sPI)}, 4608
s_lshl_b32 {S(sT1)}, {S(sNHc)}, 11
s_add_u32 {S(sT0)}, {S(sT0)}, {S(sT1)}
s_add_u32 {S(sT0)}, {S(sT0)}, {L_U + 512}
v_xor_b32 {V(c_)}, 1, {V(b)}
v_lshlrev_b32 {V(c_)}, 3, {V(c_)}
v_lshl_add_u32 {V(c_)}, {V(a)}, 5, {V(c_)}
v_add_u32 {V(vUE)}, {S(sT0)}, {V(c_)}
s_mul_i32 {S(sT0)}, {S(sW)}, 17408
s_add_u32 {S(sT0)}, {S(sT0)}, {L_SCR}
v_lshlrev_b32 {V(c_)}, 3, {V(b)}
v_lshl_add_u32 {V(c_)}, {V(a)}, 5, {V(c_)}
v_add_u32 {V(vTW)}, {S(sT0)}, {V(c_)}
v_lshl_add_u32 {V(vTR)}, {V(vLane)}, 4, {S(sT0)}
s_add_u32 {S(sDd)}, {S(sD0)}, {S(sPI)}
s_lshl_b32 {S(sDd)}, {S(sDd)}, 12
s_add_u32 {S(sDd)}, {S(sDd)}, {S(sT1)}
s_add_u32 {S(sDd)}, {S(sDd)}, {WS_AT}
s_mov_b32 {S(sE)}, {S(sNR)}
""")
va.release(m)
vLO = va()
p(f"v_lshlrev_b32 {V(vLO)}, 4, {V(vLane)}")
p("s_waitcnt vmcnt(0) lgkmcnt(0)\ns_barrier")
stamp(3)
p("L_cv:")
vY = vXR; vFA = [va(32, 4), va(32, 4)]; vFB = [va(32, 4), va(32, 4)]
def cv_reads(c):
    fa, fb = vFA[c & 1], vFB[c & 1]
    for k in range(8):
        o = ((k & 1) * 512 + 64 * c) // 4
        yield f"ds_read_b128 {V(fb+4*k,4)}, {V(vCB)} offset:{512*k + 192 - 64*c}"
        yield f"ds_read2_b32 {V(fa+4*k,2)}, {V(vCA+(k>>1))} offset0:{o} offset1:{o+1}"
        yield f"ds_read2_b32 {V(fa+4*k+2,2)}, {V(vCA+(k>>1))} offset0:{o+2} offset1:{o+3}"
for r in cv_reads(0): p(r)
order = sorted([(mm, jb) for mm in range(8) for jb in range(8) if mm + jb < 8], key=lambda x: (max(x), x[0] + x[1]))
for c in range(4):
    rd = list(cv_reads(c + 1)) if c < 3 else []
    seen = set()
    for (mm, jb) in order:
        j = mm + jb; d = vY + 4 * j
        first = c == 0 and j not in seen; seen.add(j)
        p(f"v_mfma_f32_16x16x32_bf16 {V(d,4)}, {V(vFA[c&1]+4*mm,4)}, {V(vFB[c&1]+4*jb,4)}, {'0' if first else V(d,4)}")
        if rd: p(rd.pop(0))
vUr = vFA[0]; vPt = vFB[0]; vUu = vFA[1]; vAo2 = vFB[1]
for jj in range(4): p(f"ds_read_b64 {V(vUr+2*jj,2)}, {V(vUE)} offset:{512*jj}")
p("s_barrier")
p(f"s_cmp_lg_u32 {S(sNHc)}, 0\ns_cbranch_scc1 L_cv1")
p.begin_opt()
for q in range(4): p(f"ds_write_b128 {V(vXW)}, {V(vY+16+4*q,4)} offset:{1024*q}")
p("s_branch L_cv2")
p.end_opt()
p("L_cv1:")
p.begin_opt()
for q in range(4): p(f"ds_write_b128 {V(vXW)}, {V(vY+4*q,4)} offset:{1024*q}")
for q in range(8): p(f"v_pk_mov_b32 {V(vY+2*q,2)}, {V(vY+16+2*q,2)}, {V(vY+16+2*q,2)} op_sel:[0,1]")
p.end_opt()
p("L_cv2:")
p("s_waitcnt lgkmcnt(0)\ns_barrier")
for q in range(4): p(f"ds_read_b128 {V(vPt+4*q,4)}, {V(vXRd)} offset:{1024*q}")
pr, sel = bsel(vDSK)
for jj in range(4):
    u = vUu + 4 * jj
    p(f"""v_and_b32 {V(u)}, 0xffff0000, {V(vUr+2*jj+1)}
v_lshlrev_b32 {V(u+1)}, 16, {V(vUr+2*jj+1)}
v_and_b32 {V(u+2)}, 0xffff0000, {V(vUr+2*jj)}
v_lshlrev_b32 {V(u+3)}, 16, {V(vUr+2*jj)}""")
    for k in range(2):
        p(f"v_pk_fma_f32 {V(vY+4*jj+2*k,2)}, {V(u+2*k,2)}, {V(pr,2)}, {V(vY+4*jj+2*k,2)} op_sel:[0,{sel},0] op_sel_hi:[1,{sel},1]")
for jj in range(4):
    for k in range(2):
        p(f"v_pk_add_f32 {V(vY+4*jj+2*k,2)}, {V(vY+4*jj+2*k,2)}, {V(vPt+4*jj+2*k,2)}")
        p(f"v_cvt_pk_bf16_f32 {V(vAo2+2*jj+k)}, {V(vY+4*jj+2*k)}, {V(vY+4*jj+2*k+1)}")
    p(f"ds_write_b64 {V(vTW)}, {V(vAo2+2*jj,2)} offset:{512*jj}")
p.wait_lgkm()
vSt = vAo2 + 8
p(f"""
ds_read_b128 {V(vSt,4)}, {V(vTR)}
ds_read_b128 {V(vSt+4,4)}, {V(vTR)} offset:1024
v_mov_b32 {V(vDSK)}, {V(vDSK+1)}
v_mov_b32 {V(vDSK+1)}, {V(vDSK+2)}
v_add_u32 {V(vCB)}, {2*4608}, {V(vCB)}
v_add_u32 {V(vUE)}, {2*4608}, {V(vUE)}
""")
for k in range(4): p(f"v_add_u32 {V(vCA+k)}, {2*8320}, {V(vCA+k)}")
p(f"""
buffer_store_dwordx4 {V(vSt,4)}, {V(vLO)}, {S(D_WS,4)}, {S(sDd)} offen sc1
buffer_store_dwordx4 {V(vSt+4,4)}, {V(vLO)}, {S(D_WS,4)}, {S(sDd)} offen offset:1024 sc1
s_add_u32 {S(sDd)}, {S(sDd)}, 8192
s_sub_u32 {S(sE)}, {S(sE)}, 1
s_cmp_lg_u32 {S(sE)}, 0
s_cbranch_scc1 L_cv
""")
stamp(4)
m = va.mark(); a = va(); b = va(); dbg = va()
p(f"v_lshlrev_b32 {V(a)}, 2, {V(vLane)}\nglobal_load_dword {V(dbg)}, {V(a)}, {S(P_DBG,2)} sc1\ns_waitcnt vmcnt(0)")
check_cleared(dbg)
p(f"""
s_mul_i32 {S(sT0)}, {S(sNHc)}, 2304
s_add_u32 {S(sT1)}, {S(sD0)}, {S(sPI)}
s_lshl_b32 {S(sT1)}, {S(sT1)}, 2
s_add_u32 {S(sT0)}, {S(sT0)}, {S(sT1)}
s_add_u32 {S(sT0)}, {S(sT0)}, {WS_AFL}
v_lshlrev_b32 {V(a)}, 3, {V(vLane)}
v_mov_b32 {V(b)}, 1
s_lshl_b32 {S(sT1)}, 1, {S(sNR)}
s_sub_u32 {S(sT1)}, {S(sT1)}, 1
s_mov_b32 exec_lo, {S(sT1)}
s_mov_b32 exec_hi, 0
buffer_store_dword {V(b)}, {V(a)}, {S(D_WS,4)}, {S(sT0)} offen sc1
s_mov_b64 exec, -1
""")
va.release(m)
stamp(5)
p(f"s_cmp_lt_u32 {S(sIDX)}, 24\ns_cbranch_scc1 L_c4")
dump_stamps()
p("s_endpgm\nL_c4:")
va.release(g2_mark)
vCR = c_addr_setup()
p(f"s_lshl_b32 {S(sM0)}, {S(sW)}, 10\ns_lshl_b32 {S(sKO)}, {S(sROT2)}, 7\ns_waitcnt lgkmcnt(0)\ns_barrier")
for i in range(4): c_issue(i, i)
for i in range(9):
    p.wait_vm(f"c{i}"); p.wait_lgkm(); p("s_barrier")
    if i >= 1 and i + 3 < 9: c_issue(i + 3, (i + 3) % 4)
    if i == 6: x_issue(1)
    c_read(i, i % 4, vCR)
p.wait_vm(); p("s_barrier")
x_read(1)
p("s_waitcnt vmcnt(0) lgkmcnt(0)\ns_barrier\ns_branch L_gemm2")
p("L_codeend:")

body = p.finalize()
hdr = open("gated_mix__ssm_conv_s4d__ssm_conv_s5__prompt.s.ref").read().split("; Override launch")[0]
txt = hdr + f"""; @launch grid=(256,1,1) block=(256,1,1) lds=163840
.amdgcn_target "amdgcn-amd-amdhsa--gfx950"
.text
.globl {KN}
.p2align 8
.type {KN},@function
{KN}:
{body}
  s_endpgm
.section .rodata,"a"
.p2align 6
.amdhsa_kernel {KN}
  .amdhsa_next_free_vgpr 512
  .amdhsa_next_free_sgpr 102
  .amdhsa_accum_offset 256
  .amdhsa_group_segment_fixed_size 0
  .amdhsa_kernarg_size 160
  .amdhsa_user_sgpr_count 2
  .amdhsa_user_sgpr_kernarg_segment_ptr 1
  .amdhsa_system_sgpr_workgroup_id_x 1
.end_amdhsa_kernel
"""
open(OUTF, "w").write(txt)
print("vgpr high", va.hi, "lines", txt.count("\n"))
```

```python
import sys, math, struct
sys.path.insert(0, "gen")
from asmgen import *

KN = "gated_mix__ssm_conv_s4d__ssm_conv_s5__prompt_kernel"
ARGS = sys.argv[1:]
STAMPS = "--stamps" in ARGS
CYC = "--cyc" in ARGS
OUTF = [a for a in ARGS if not a.startswith("--")][0]
def opt(name, default):
    for a in ARGS:
        if a.startswith(f"--{name}="): return int(a.split("=")[1])
    return default
S1, S2, S3 = opt("s1", -1), opt("s2", -1), opt("s3", -1)
SYNC = {}
for q in (S1, S2, S3):
    if q >= 0: SYNC[q] = SYNC.get(q, 0) + 1
ROT = opt("rot", 0)
PFG = opt("pfg", 1)
PFC = opt("pfc", 1)
SPIN = 1 << 16

WS_AGG = 0
WS_HFL = 147456
WS_AFL = WS_HFL + 4096
WS_GP = 0x28000
WS_H = 0x100000
WS_AT = 0x600000
WS_ST = 0x900000
WS_SIZE = 0x1000000

p = Prog()
sWG = 2
P_X, P_LOGA, P_AIM, P_ACRE, P_ACIM, P_ALDT, P_ADSK = 16, 18, 20, 22, 24, 26, 28
P_LRE, P_LIM, P_BRE, P_BIM, P_CRE, P_CIM, P_BLDT, P_BDSK = 32, 34, 36, 38, 40, 42, 44, 46
P_GW, P_OUT, P_DBG, P_WS = 48, 50, 52, 54
D_X, D_WS, D_BRE, D_BIM, D_C, D_OUT, D_AGG = 56, 60, 64, 68, 72, 80, 84
sW, sXCD, sIDX = 3, 4, 5
sT0, sT1, sT2, sT3 = 6, 7, 8, 9
sCNT = 10
sRC64, sCT, sROT2 = 11, 12, 13
sKO, sM0 = 14, 15
sQ, sLO, sHI = 76, 77, 78
sA, sB, sC, sDd, sE, sF = 88, 89, 90, 91, 92, 93
sNR = 94
sST = 96
sEVEN = 100

va = Alloc(1, 256)
vLane = va()
vSTAMP = va(8) if STAMPS else None
def stamp(i):
    if STAMPS:
        p(f"{'s_memtime' if CYC else 's_memrealtime'} {S(sST,2)}\ns_waitcnt lgkmcnt(0)\nv_mov_b32 {V(vSTAMP+i)}, {S(sST)}")
def dump_stamps():
    if STAMPS:
        m = va.mark(); t = va()
        p(f"""s_lshl_b32 {S(sT0)}, {S(sWG)}, 4
s_add_u32 {S(sT0)}, {S(sT0)}, {S(sW)}
s_lshl_b32 {S(sT0)}, {S(sT0)}, 5
s_add_u32 {S(sT0)}, {S(sT0)}, {WS_ST}
v_mov_b32 {V(t)}, 0
s_mov_b64 exec, 1
buffer_store_dwordx4 {V(vSTAMP,4)}, {V(t)}, {S(D_WS,4)}, {S(sT0)} offen
buffer_store_dwordx4 {V(vSTAMP+4,4)}, {V(t)}, {S(D_WS,4)}, {S(sT0)} offen offset:16
s_mov_b64 exec, -1""")
        va.release(m)
def srd(d, b, size):
    p(f"s_mov_b32 {S(d)}, {S(b)}\ns_and_b32 {S(d+1)}, {S(b+1)}, 0xffff\ns_mov_b32 {S(d+2)}, {size}\ns_mov_b32 {S(d+3)}, 0x20000")
PLAIN = [False]
def cmul(d, x, y):
    if PLAIN[0]:
        p(f"v_mul_f32 {V(d)}, {V(x)}, {V(y)}\nv_mul_f32 {V(d+1)}, {V(x+1)}, {V(y)}")
        p(f"v_fma_f32 {V(d)}, -{V(x+1)}, {V(y+1)}, {V(d)}\nv_fmac_f32 {V(d+1)}, {V(x)}, {V(y+1)}")
    else:
        p(f"v_pk_mul_f32 {V(d,2)}, {V(x,2)}, {V(y,2)} op_sel_hi:[1,0]")
        p(f"v_pk_fma_f32 {V(d,2)}, {V(x,2)}, {V(y,2)}, {V(d,2)} op_sel:[1,1,0] op_sel_hi:[0,1,1] neg_lo:[1,0,0]")
def cfma(d, x, y, c):
    p(f"v_pk_fma_f32 {V(d,2)}, {V(x,2)}, {V(y,2)}, {V(c,2)} op_sel_hi:[1,0,1]")
    p(f"v_pk_fma_f32 {V(d,2)}, {V(x,2)}, {V(y,2)}, {V(d,2)} op_sel:[1,1,0] op_sel_hi:[0,1,1] neg_lo:[1,0,0]")
LOG2E = "0x3fb8aa3b"; NLOG2E = "0xbfb8aa3b"; INV2PI = "0.15915494"
def f32hex(x): return "0x%08x" % struct.unpack("<I", struct.pack("<f", x))[0]
def cexp(d, er, ph, mult, t):
    if mult == 1:
        p(f"v_exp_f32 {V(t)}, {V(er)}\nv_fract_f32 {V(t+1)}, {V(ph)}")
    else:
        p(f"v_mul_f32 {V(t)}, {f32hex(mult)}, {V(er)}\nv_mul_f32 {V(t+1)}, {f32hex(mult)}, {V(ph)}\nv_exp_f32 {V(t)}, {V(t)}\nv_fract_f32 {V(t+1)}, {V(t+1)}")
    p(f"v_cos_f32 {V(d)}, {V(t+1)}\nv_sin_f32 {V(d+1)}, {V(t+1)}")
    p(f"v_mul_f32 {V(d)}, {V(d)}, {V(t)}\nv_mul_f32 {V(d+1)}, {V(d+1)}, {V(t)}")
def cv(d, x, y): p(f"v_cvt_pk_bf16_f32 {V(d)}, {x}, {y}")
def unpack(d, s): p(f"v_lshlrev_b32 {V(d)}, 16, {V(s)}\nv_and_b32 {V(d+1)}, 0xffff0000, {V(s)}")
lab = [0]
def newlab(s):
    lab[0] += 1; return f"L{s}{lab[0]}"
def spin(first_check, reload):
    ok = newlab("ok"); lp = newlab("lp")
    first_check()
    p(f"s_cbranch_vccz {ok}")
    p.begin_opt()
    p(f"s_mov_b32 {S(sCNT)}, {SPIN}\n{lp}:")
    reload(); p("s_waitcnt vmcnt(0)"); first_check()
    p(f"s_cbranch_vccz {ok}\ns_sub_u32 {S(sCNT)}, {S(sCNT)}, 1\ns_cmp_lg_u32 {S(sCNT)}, 0\ns_cbranch_scc1 {lp}")
    p.end_opt()
    p(f"{ok}:")
def dbg_load(vt, vo): p(f"global_load_dword {V(vt)}, {V(vo)}, {S(P_DBG,2)} sc1")
def check_cleared(vt, vo):
    spin(lambda: p(f"v_cmp_eq_u32 vcc, 0, {V(vt)}"), lambda: dbg_load(vt, vo))
def bar(): p("s_barrier")
def adv_ko(step, lim): p(f"s_add_u32 {S(sKO)}, {S(sKO)}, {step}\ns_cmp_ge_u32 {S(sKO)}, {lim}\ns_cselect_b32 {S(sKO)}, 0, {S(sKO)}")

p(f"""
s_cmp_ge_u32 {S(sWG)}, 256
s_cbranch_scc1 L_exit
s_load_dwordx16 s[16:31], s[0:1], 0
s_load_dwordx16 s[32:47], s[0:1], 64
s_load_dwordx8 s[48:55], s[0:1], 128
s_getpc_b64 {S(sT0,2)}
L_pc:
""")
vPF = va(); vL4 = va()
m = va.mark(); t = va()
p(f"""
v_lshrrev_b32 {V(t)}, 6, v0
v_and_b32 {V(vLane)}, 63, v0
v_readfirstlane_b32 {S(sW)}, {V(t)}
s_and_b32 {S(sXCD)}, {S(sWG)}, 7
s_lshr_b32 {S(sIDX)}, {S(sWG)}, 3
""")
p(f"""
s_cmp_lg_u32 {S(sW)}, 0
s_cbranch_scc1 L_nopf
s_and_b32 {S(sT2)}, {S(sIDX)}, 7
s_lshl_b32 {S(sT2)}, {S(sT2)}, 13
v_lshl_add_u32 {V(t)}, {V(vLane)}, 7, {S(sT2)}
v_min_u32 {V(t)}, L_codeend-L_pc-4, {V(t)}
global_load_dword {V(vPF)}, {V(t)}, {S(sT0,2)}
L_nopf:
v_lshlrev_b32 {V(vL4)}, 2, {V(vLane)}
s_and_b32 {S(sQ)}, {S(sW)}, 3
s_and_b32 {S(sLO)}, {S(sW)}, 1
s_lshr_b32 {S(sHI)}, {S(sQ)}, 1
""")
va.release(m)
if STAMPS:
    for i in range(8): p(f"v_mov_b32 {V(vSTAMP+i)}, 0")
p(f"""
s_mul_i32 {S(sT2)}, {S(sIDX)}, 43
s_lshr_b32 {S(sT2)}, {S(sT2)}, 8
s_mul_i32 {S(sT3)}, {S(sT2)}, 6
s_sub_u32 {S(sCT)}, {S(sIDX)}, {S(sT3)}
s_lshl_b32 {S(sRC64)}, {S(sXCD)}, 2
s_add_u32 {S(sRC64)}, {S(sRC64)}, {S(sT2)}
s_lshr_b32 {S(sROT2)}, {S(sCT)}, 1
s_add_u32 {S(sROT2)}, {S(sROT2)}, {S(sCT)}
s_lshl_b32 {S(sT2)}, {S(sT2)}, 1
s_add_u32 {S(sROT2)}, {S(sROT2)}, {S(sT2)}
s_cmp_ge_u32 {S(sROT2)}, 9
s_cselect_b32 {S(sT2)}, 9, 0
s_sub_u32 {S(sROT2)}, {S(sROT2)}, {S(sT2)}
""")
sRC, sPS = sA, sB
if opt("gmap", 1):
    p(f"""
s_and_b32 {S(sT0)}, {S(sXCD)}, 1
s_mul_i32 {S(sT0)}, {S(sT0)}, 18
s_add_u32 {S(sT0)}, {S(sT0)}, {S(sIDX)}
s_lshr_b32 {S(sPS)}, {S(sT0)}, 2
s_and_b32 {S(sT0)}, {S(sT0)}, 3
s_lshr_b32 {S(sRC)}, {S(sXCD)}, 1
s_lshl_b32 {S(sRC)}, {S(sRC)}, 2
s_add_u32 {S(sRC)}, {S(sRC)}, {S(sT0)}
s_add_u32 {S(sKO)}, {S(sPS)}, {S(sT0)}
s_lshl_b32 {S(sKO)}, {S(sKO)}, 1
s_mul_i32 {S(sT0)}, {S(sKO)}, 57
s_lshr_b32 {S(sT0)}, {S(sT0)}, 9
s_mul_i32 {S(sT0)}, {S(sT0)}, 9
s_sub_u32 {S(sKO)}, {S(sKO)}, {S(sT0)}
s_lshl_b32 {S(sKO)}, {S(sKO)}, 7
s_mul_i32 {S(sKO)}, {S(sKO)}, {ROT}
s_waitcnt lgkmcnt(0)
""")
else:
    p(f"""
s_cmp_ge_u32 {S(sIDX)}, 9
s_cselect_b32 {S(sT0)}, 1, 0
s_mul_i32 {S(sT1)}, {S(sT0)}, 9
s_sub_u32 {S(sPS)}, {S(sIDX)}, {S(sT1)}
s_lshl_b32 {S(sRC)}, {S(sXCD)}, 1
s_add_u32 {S(sRC)}, {S(sRC)}, {S(sT0)}
s_lshl_b32 {S(sT0)}, {S(sT0)}, 2
s_add_u32 {S(sKO)}, {S(sPS)}, {S(sT0)}
s_cmp_ge_u32 {S(sKO)}, 9
s_cselect_b32 {S(sT0)}, 9, 0
s_sub_u32 {S(sKO)}, {S(sKO)}, {S(sT0)}
s_lshl_b32 {S(sKO)}, {S(sKO)}, 7
s_waitcnt lgkmcnt(0)
""")
srd(D_X, P_X, 2359296); srd(D_WS, P_WS, WS_SIZE)
srd(D_BRE, P_BRE, 663552); srd(D_BIM, P_BIM, 663552); srd(D_OUT, P_OUT, 4718592)
p(f"""
s_cmp_eq_u32 {S(sHI)}, 0
s_cselect_b32 {S(D_C)}, {S(P_CRE)}, {S(P_CIM)}
s_cselect_b32 {S(D_C+1)}, {S(P_CRE+1)}, {S(P_CIM+1)}
s_and_b32 {S(D_C+1)}, {S(D_C+1)}, 0xffff
s_mov_b32 {S(D_C+2)}, 663552
s_mov_b32 {S(D_C+3)}, 0x20000
""")
stamp(0)
p(f"""
s_cmp_ge_u32 {S(sIDX)}, 18
s_cbranch_scc1 L_conv
s_cmp_ge_u32 {S(sW)}, 4
s_cbranch_scc1 L_GB
""")
vXT = va(12, 2)
vC = va(108, 4)
g2_mark = va.mark()
free_mark = vXT

KB = 1024
CREG = [136*KB, 112*KB, 40*KB, 64*KB, 88*KB, 136*KB, 112*KB, 40*KB, 64*KB]
def gslot(c): return ((c + 1) % 3) * 32768
def c_src_setup():
    r = va(2); m = va.mark(); a = va(); b = va()
    p(f"""
v_lshrrev_b32 {V(a)}, 4, {V(vLane)}
v_and_b32 {V(b)}, 7, {V(vLane)}
v_xor_b32 {V(a)}, {V(a)}, {V(b)}
v_lshrrev_b32 {V(b)}, 3, {V(vLane)}
v_mul_u32_u24 {V(b)}, 1152, {V(b)}
v_lshl_add_u32 {V(r)}, {V(a)}, 4, {V(b)}
v_xor_b32 {V(a)}, 4, {V(a)}
v_lshl_add_u32 {V(r+1)}, {V(a)}, 4, {V(b)}
s_mul_i32 {S(sF)}, {S(sCT)}, {96*1152}
s_mul_i32 {S(sT0)}, {S(sLO)}, {48*1152}
s_add_u32 {S(sF)}, {S(sF)}, {S(sT0)}
s_mul_i32 {S(sE)}, {S(sQ)}, 6144
""")
    va.release(m); return r
def c_issue(i, r):
    p(f"s_add_u32 {S(sT0)}, {S(sF)}, {S(sKO)}")
    for j in range(6):
        p(f"s_add_u32 m0, {S(sE)}, {CREG[i] + j*1024}\ns_add_u32 {S(sT1)}, {S(sT0)}, {j*8*1152}")
        p(f"buffer_load_dwordx4 {V(r+(j&1))}, {S(D_C,4)}, {S(sT1)} offen lds", tag=f"c{i}")
    adv_ko(128, 1152)
def c_addr_setup():
    r = va(6); m = va.mark(); a = va(); b = va()
    p(f"""
s_mul_i32 {S(sT0)}, {S(sQ)}, 6144
v_and_b32 {V(a)}, 15, {V(vLane)}
v_lshrrev_b32 {V(b)}, 1, {V(a)}
v_lshlrev_b32 {V(a)}, 7, {V(a)}
v_add_u32 {V(a)}, {S(sT0)}, {V(a)}
v_lshrrev_b32 {V(r)}, 4, {V(vLane)}
v_xor_b32 {V(b)}, {V(b)}, {V(r)}
v_lshl_add_u32 {V(r)}, {V(b)}, 4, {V(a)}
v_xor_b32 {V(r+1)}, 64, {V(r)}
v_add_u32 {V(r+2)}, 0x10000, {V(r)}
v_add_u32 {V(r+3)}, 0x10000, {V(r+1)}
v_add_u32 {V(r+4)}, 0x20000, {V(r)}
v_add_u32 {V(r+5)}, 0x20000, {V(r+1)}
""")
    va.release(m); return r
def c_read(step, r):
    i, s = step >> 1, step & 1
    for dj in range(3):
        p(f"ds_read_b128 {V(vC+((step%9)*3+dj)*4,4)}, {V(r + (CREG[i]>>16)*2 + s)} offset:{(CREG[i]&0xffff) + dj*2048}", tag=f"cr{i}")
def x_issue():
    m = va.mark(); a = va(); b = va()
    p(f"""s_lshl_b32 {S(sT0)}, {S(sRC64)}, 1
s_add_u32 {S(sT0)}, {S(sT0)}, {S(sHI)}
s_mul_i32 {S(sT0)}, {S(sT0)}, {32*1152}
s_mul_i32 {S(sT1)}, {S(sCT)}, 192
s_add_u32 {S(sT0)}, {S(sT0)}, {S(sT1)}
s_mul_i32 {S(sT1)}, {S(sLO)}, 96
s_add_u32 {S(sT0)}, {S(sT0)}, {S(sT1)}
s_mul_i32 {S(sT1)}, {S(sQ)}, 6144""")
    for j in range(3):
        p(f"""v_add_u32 {V(a)}, {64*j}, {V(vLane)}
v_mul_u32_u24 {V(b)}, 0x2aab, {V(a)}
v_lshrrev_b32 {V(b)}, 16, {V(b)}
v_mul_u32_u24 {V(b)}, {1152-96}, {V(b)}
v_lshl_add_u32 {V(a)}, {V(a)}, 4, {V(b)}
s_add_u32 m0, {S(sT1)}, {CREG[4] + j*1024}""")
        p(f"buffer_load_dwordx4 {V(a)}, {S(D_X,4)}, {S(sT0)} offen lds", tag="xt")
    va.release(m)
def x_read():
    m = va.mark(); a = va(); b = va()
    p(f"""
s_mul_i32 {S(sT0)}, {S(sQ)}, 6144
s_add_u32 {S(sT0)}, {S(sT0)}, {CREG[4]}
v_and_b32 {V(a)}, 15, {V(vLane)}
v_mul_u32_u24 {V(a)}, 96, {V(a)}
v_lshrrev_b32 {V(b)}, 4, {V(vLane)}
v_lshl_add_u32 {V(a)}, {V(b)}, 3, {V(a)}
v_add_u32 {V(a)}, {S(sT0)}, {V(a)}
""")
    for tb in range(2):
        for dj in range(3):
            p(f"ds_read_b64 {V(vXT+(tb*3+dj)*2,2)}, {V(a)} offset:{tb*16*96 + dj*32}", tag="xr")
    va.release(m)
def b_cstream_tail(rs, ra, done, sync):
    def iss(i):
        for _ in range(sync.get(i, 0)): bar()
        c_issue(i, rs)
    x_issue()
    for i in range(done, 4): iss(i)
    p.wait_vm("xt"); x_read(); p.wait_lgkm()
    iss(4)
    for i in range(4):
        p.wait_vm(f"c{i}")
        c_read(2*i, ra); c_read(2*i+1, ra)
        p.wait_lgkm()
        iss(5 + i)
    p.wait_vm("c4")
    c_read(8, ra)
    for _ in range(sync.get(9, 0)): bar()
    p("s_waitcnt vmcnt(0) lgkmcnt(0)")
    bar()
    bar()
def a_cread():
    m = va.mark()
    ra = c_addr_setup()
    bar()
    for st in range(9, 18): c_read(st, ra)
    p("s_waitcnt lgkmcnt(0)")
    bar()
    va.release(m)

va.release(free_mark)
p(f"s_cmp_ge_u32 {S(sWG)}, 64\ns_cbranch_scc1 L_noclr\ns_cmp_lg_u32 {S(sW)}, 0\ns_cbranch_scc1 L_noclr")
p.begin_opt()
m = va.mark(); a = va(); z4 = va(4, 4)
p(f"""
s_lshl_b32 {S(sT0)}, {S(sWG)}, 12
v_lshlrev_b32 {V(a)}, 4, {V(vLane)}
v_mov_b32 {V(z4)}, -1
v_mov_b32 {V(z4+1)}, -1
v_mov_b32 {V(z4+2)}, -1
v_mov_b32 {V(z4+3)}, -1
""")
for k in range(4): p(f"buffer_store_dwordx4 {V(z4,4)}, {V(a)}, {S(D_WS,4)}, {S(sT0)} offen offset:{1024*k} sc1")
p("s_nop 1")
va.release(m)
p.end_opt()
p("L_noclr:")
vP = va(3)
m = va.mark(); b = va()
p(f"""
s_lshl_b32 {S(sT0)}, {S(sPS)}, 1
s_add_u32 {S(sT0)}, {S(sT0)}, {S(sLO)}
s_lshl_b32 {S(sT0)}, {S(sT0)}, 6
v_and_b32 {V(b)}, 31, {V(vLane)}
v_lshl_add_u32 {V(b)}, {V(b)}, 1, {S(sT0)}
global_load_ushort {V(vP)}, {V(b)}, {S(P_LRE,2)}
global_load_ushort {V(vP+1)}, {V(b)}, {S(P_LIM,2)}
global_load_ushort {V(vP+2)}, {V(b)}, {S(P_BLDT,2)}
""")
va.release(m)
def frag_base(a, b, t):
    p(f"""
v_and_b32 {V(a)}, 31, {V(vLane)}
v_bfe_u32 {V(b)}, {V(vLane)}, 1, 3
v_lshlrev_b32 {V(a)}, 7, {V(a)}
v_lshrrev_b32 {V(t)}, 5, {V(vLane)}
v_xor_b32 {V(b)}, {V(b)}, {V(t)}
v_lshl_add_u32 {V(a)}, {V(b)}, 4, {V(a)}""")
vRA = va(8); vRB = va(8)
m = va.mark(); a = va(); b = va()
frag_base(a, b, vRA)
p(f"""
s_lshl_b32 {S(sT0)}, {S(sHI)}, 13
s_lshl_b32 {S(sT1)}, {S(sLO)}, 12
s_add_u32 {S(sT1)}, {S(sT1)}, 16384
""")
for s in range(4):
    p(f"v_xor_b32 {V(b)}, {32*s}, {V(a)}\nv_add_u32 {V(vRA+s)}, {S(sT0)}, {V(b)}\nv_add_u32 {V(vRB+s)}, {S(sT1)}, {V(b)}")
    p(f"v_add_u32 {V(vRA+4+s)}, 0x10000, {V(vRA+s)}\nv_add_u32 {V(vRB+4+s)}, 0x10000, {V(vRB+s)}")
va.release(m)
sC64 = sC
vAO = va(); vPOs = va(16); vHO = va(2)
m = va.mark(); a = va()
p(f"""
s_lshl_b32 {S(sT0)}, {S(sPS)}, 1
s_add_u32 {S(sT0)}, {S(sT0)}, {S(sLO)}
s_lshl_b32 {S(sT0)}, {S(sT0)}, 13
s_add_u32 {S(D_AGG)}, {S(P_WS)}, {S(sT0)}
s_addc_u32 {S(D_AGG+1)}, {S(P_WS+1)}, 0
s_and_b32 {S(D_AGG+1)}, {S(D_AGG+1)}, 0xffff
s_mov_b32 {S(D_AGG+2)}, 8192
s_mov_b32 {S(D_AGG+3)}, 0x20000
s_lshl_b32 {S(sC64)}, {S(sRC)}, 1
s_add_u32 {S(sC64)}, {S(sC64)}, {S(sHI)}
v_and_b32 {V(vAO)}, 31, {V(vLane)}
v_lshlrev_b32 {V(vAO)}, 3, {V(vAO)}
s_lshl_b32 {S(sT0)}, {S(sC64)}, 8
v_add_u32 {V(vAO)}, {S(sT0)}, {V(vAO)}
v_lshrrev_b32 {V(a)}, 5, {V(vLane)}
v_lshlrev_b32 {V(a)}, 12, {V(a)}
v_sub_u32 {V(a)}, {V(vAO)}, {V(a)}
v_lshlrev_b32 {V(vHO)}, 4, {V(vLane)}
v_xor_b32 {V(vHO+1)}, 64, {V(vHO)}
s_mul_i32 {S(sDd)}, {S(sC64)}, 147456
s_lshl_b32 {S(sT1)}, {S(sPS)}, 14
s_add_u32 {S(sDd)}, {S(sDd)}, {S(sT1)}
s_lshl_b32 {S(sT1)}, {S(sLO)}, 12
s_add_u32 {S(sDd)}, {S(sDd)}, {S(sT1)}
s_add_u32 {S(sDd)}, {S(sDd)}, {WS_H}
s_add_u32 {S(sE)}, {S(sDd)}, 8192
s_lshl_b32 {S(sF)}, {S(sC64)}, 7
s_lshl_b32 {S(sT1)}, {S(sPS)}, 3
s_add_u32 {S(sF)}, {S(sF)}, {S(sT1)}
s_lshl_b32 {S(sT1)}, {S(sLO)}, 2
s_add_u32 {S(sF)}, {S(sF)}, {S(sT1)}
s_add_u32 {S(sF)}, {S(sF)}, {WS_HFL}
""")
for i in range(16): p(f"v_subrev_u32 {V(vPOs+i)}, {256*(i+1)}, {V(a)}\nv_min_u32 {V(vPOs+i)}, 0x10000, {V(vPOs+i)}")
va.release(m)
vL, vL16, vL32, vL64, vL1k, vCo = va(2), va(2), va(2), va(2), va(2), va(2)
vMR, vMI = va(2), va(2)
m = va.mark(); tq = va(2); tr = va(2); er = va(); ph = va(); dtv = va()
p(f"""
v_lshlrev_b32 {V(vP)}, 16, {V(vP)}
v_lshlrev_b32 {V(vP+1)}, 16, {V(vP+1)}
v_lshlrev_b32 {V(vP+2)}, 16, {V(vP+2)}
v_mul_f32 {V(dtv)}, {LOG2E}, {V(vP+2)}
v_exp_f32 {V(dtv)}, {V(dtv)}
v_cvt_pk_bf16_f32 {V(dtv)}, 0, {V(dtv)}
v_mul_f32 {V(er)}, {V(dtv)}, {V(vP)}
v_mul_f32 {V(ph)}, {V(dtv)}, {V(vP+1)}
v_mul_f32 {V(er)}, {LOG2E}, {V(er)}
v_mul_f32 {V(ph)}, {INV2PI}, {V(ph)}
""")
cexp(vL, er, ph, 1, tq)
p(f"""
v_mul_f32 {V(er)}, {V(vP)}, {V(vP)}
v_fma_f32 {V(er)}, {V(vP+1)}, {V(vP+1)}, {V(er)}
v_rcp_f32 {V(er)}, {V(er)}
v_add_f32 {V(tq)}, -1.0, {V(vL)}
v_mov_b32 {V(tq+1)}, {V(vL+1)}
v_add_f32 {V(er)}, {V(er)}, {V(er)}
v_mul_f32 {V(tr)}, {V(vP)}, {V(er)}
v_mul_f32 {V(tr+1)}, -{V(vP+1)}, {V(er)}
""")
cmul(vCo, tq, tr)
cmul(tq, vL, vL); cmul(tr, tq, tq); cmul(tq, tr, tr); cmul(vL16, tq, tq)
cmul(vL32, vL16, vL16); cmul(vL64, vL32, vL32)
cmul(tq, vL64, vL64); cmul(tr, tq, tq); cmul(tq, tr, tr); cmul(vL1k, tq, tq)
cmul(tq, vCo, vL32)
p(f"""
v_cmp_gt_u32 vcc, 32, {V(vLane)}
v_cndmask_b32 {V(tq)}, {V(tq)}, {V(vCo)}, vcc
v_cndmask_b32 {V(tq+1)}, {V(tq+1)}, {V(vCo+1)}, vcc
""")
cmul(tr, tq, vL16)
p(f"v_mov_b32 {V(vMR)}, {V(tq)}\nv_mov_b32 {V(vMR+1)}, {V(tr)}\nv_mov_b32 {V(vMI)}, {V(tq+1)}\nv_mov_b32 {V(vMI+1)}, {V(tr+1)}")
va.release(m)
p(f"s_cmp_ge_u32 {S(sWG)}, 64\ns_cbranch_scc1 L_noclr2\ns_cmp_lg_u32 {S(sW)}, 0\ns_cbranch_scc1 L_noclr2")
p.begin_opt()
m = va.mark(); a = va(); b = va()
p(f"""s_lshl_b32 {S(sT0)}, {S(sWG)}, 2
v_mov_b32 {V(a)}, {S(sT0)}
v_mov_b32 {V(b)}, 1
s_waitcnt vmcnt(0)
s_mov_b64 exec, 1
global_store_dword {V(a)}, {V(b)}, {S(P_DBG,2)} sc1
s_mov_b64 exec, -1""")
va.release(m)
p.end_opt()
p("L_noclr2:")
vAcc = va(64, 4); vF = va(64, 4); vDBG = va()
def g_reads(c, s):
    hi = (gslot(c) >> 16) * 4; lo = gslot(c) & 0xffff
    return [f"ds_read_b128 {V(vF+16*s,4)}, {V(vRA+hi+s)} offset:{lo}",
            f"ds_read_b128 {V(vF+16*s+8,4)}, {V(vRB+hi+s)} offset:{lo}",
            f"ds_read_b128 {V(vF+16*s+4,4)}, {V(vRA+hi+s)} offset:{lo+4096}",
            f"ds_read_b128 {V(vF+16*s+12,4)}, {V(vRB+hi+s)} offset:{lo+8192}"]
if "--nogr" in ARGS:
    g_reads = lambda c, s: ["s_nop 0"] * 4
def g_mfma(s, k, first):
    if "--nogm" in ARGS: return
    rb, im = k & 1, k >> 1
    d = vAcc + 16 * (2 * im + rb)
    p(f"v_mfma_f32_32x32x16_bf16 {V(d,16)}, {V(vF+16*s+4*rb,4)}, {V(vF+16*s+8+4*im,4)}, {'0' if first else V(d,16)}")
for c in range(9):
    p.wait_lgkm(); bar()
    if c == 0: stamp(1)
    if c == 5: dbg_load(vDBG, vL4)
    for r in g_reads(c, 0): p(r)
    rd = g_reads(c, 1) + g_reads(c, 2)
    if c == 0:
        for r in rd[:4]: p(r)
        rd = rd[4:]
    else:
        for k in range(4):
            g_mfma(3, k, False); p(rd.pop(0)); p(rd.pop(0))
    rd += g_reads(c, 3)
    for s in range(3):
        for k in range(4):
            g_mfma(s, k, c == 0 and s == 0)
            if rd: p(rd.pop(0))
for k in range(4): g_mfma(3, k, False)
check_cleared(vDBG, vL4)
stamp(2)
def accR(s): return vAcc + 16 * (s >> 3) + 2 * (s & 7)
def accI(s): return vAcc + 32 + 16 * (s >> 3) + 2 * (s & 7)
def scan_step(dR, dI, hR, hI, bR, bI):
    p(f"v_pk_fma_f32 {V(dR,2)}, {V(hR,2)}, {V(vL,2)}, {V(bR,2)} op_sel_hi:[1,0,1]")
    p(f"v_pk_fma_f32 {V(dI,2)}, {V(hI,2)}, {V(vL,2)}, {V(bI,2)} op_sel_hi:[1,0,1]")
    p(f"v_pk_fma_f32 {V(dR,2)}, {V(hI,2)}, {V(vL,2)}, {V(dR,2)} op_sel:[0,1,0] neg_lo:[0,1,0] neg_hi:[0,1,0]")
    p(f"v_pk_fma_f32 {V(dI,2)}, {V(hR,2)}, {V(vL,2)}, {V(dI,2)} op_sel:[0,1,0]")
st = [(va(2), va(2)), (va(2), va(2))]
hR, hI = accR(0), accI(0)
for s in range(1, 16):
    dR, dI = st[s & 1]
    scan_step(dR, dI, hR, hI, accR(s), accI(s))
    hR, hI = dR, dI
vA0 = va(2); vH0 = va(2); vH1 = va(2); vAW = va(2); vLR = va(2); vLI = va(2); vPO = va()
p(f"""
v_fma_f32 {V(vH0)}, {V(hR)}, {V(vL16)}, {V(hR+1)}
v_fma_f32 {V(vH0+1)}, {V(hI)}, {V(vL16)}, {V(hI+1)}
v_fma_f32 {V(vH0)}, -{V(hI)}, {V(vL16+1)}, {V(vH0)}
v_fma_f32 {V(vH0+1)}, {V(hR)}, {V(vL16+1)}, {V(vH0+1)}
v_mov_b32 {V(vH1)}, {V(vH0)}
v_mov_b32 {V(vH1+1)}, {V(vH0+1)}
v_permlane32_swap_b32 {V(vH0)}, {V(vH1)}
v_permlane32_swap_b32 {V(vH0+1)}, {V(vH1+1)}
""")
cfma(vAW, vH0, vL32, vH1)
p(f"""
v_min_u32 {V(vAW)}, -2, {V(vAW)}
v_min_u32 {V(vAW+1)}, -2, {V(vAW+1)}
s_mov_b32 exec_hi, 0
buffer_store_dwordx2 {V(vAW,2)}, {V(vAO)}, {S(D_AGG,4)}, 0 offen sc1
s_mov_b32 exec_hi, -1
""")
if S1 >= 0: bar()
stamp(3)
p(f"""
v_mov_b32 {V(vA0)}, {V(hR)}
v_mov_b32 {V(vA0+1)}, {V(hI)}
v_cmp_gt_u32 vcc, 32, {V(vLane)}
v_cndmask_b32 {V(vH0)}, {V(vH0)}, 0, vcc
v_cndmask_b32 {V(vH0+1)}, {V(vH0+1)}, 0, vcc
""")
cfma(vA0, vH0, vL16, vA0)
cmul(vH1, vH0, vCo); cmul(vAW, vA0, vCo)
p(f"v_mov_b32 {V(vLR)}, {V(vH1)}\nv_mov_b32 {V(vLR+1)}, {V(vAW)}\nv_mov_b32 {V(vLI)}, {V(vH1+1)}\nv_mov_b32 {V(vLI+1)}, {V(vAW+1)}")
def bR(s): return vF + 16 * (s >> 3) + 2 * (s & 7)
def bI(s): return vF + 32 + 16 * (s >> 3) + 2 * (s & 7)
for s in range(16):
    p(f"v_pk_mul_f32 {V(bR(s),2)}, {V(accR(s),2)}, {V(vCo,2)} op_sel_hi:[1,0]")
    p(f"v_pk_mul_f32 {V(bI(s),2)}, {V(accI(s),2)}, {V(vCo,2)} op_sel_hi:[1,0]")
    p(f"v_pk_fma_f32 {V(bR(s),2)}, {V(accI(s),2)}, {V(vCo,2)}, {V(bR(s),2)} op_sel:[0,1,0] neg_lo:[0,1,0] neg_hi:[0,1,0]")
    p(f"v_pk_fma_f32 {V(bI(s),2)}, {V(accR(s),2)}, {V(vCo,2)}, {V(bI(s),2)} op_sel:[0,1,0]")
if opt("aggwait", 1): p("s_waitcnt vmcnt(0)")
def poll_loads():
    for i in range(16): p(f"buffer_load_dwordx2 {V(vAcc+2*i,2)}, {V(vPOs+i)}, {S(D_AGG,4)}, 0 offen sc1")
def poll_check():
    p(f"v_max_u32 {V(vPO)}, {V(vAcc)}, {V(vAcc+1)}")
    for i in range(1, 16): p(f"v_max3_u32 {V(vPO)}, {V(vAcc+2*i)}, {V(vAcc+2*i+1)}, {V(vPO)}")
    p(f"v_cmp_eq_u32 vcc, -1, {V(vPO)}")
poll_loads()
if S2 >= 0: bar()
spin(poll_check, poll_loads)
stamp(4)
for i in range(14, -1, -1): cfma(vAcc + 2*i, vAcc + 2*i + 2, vL64, vAcc + 2*i)
p(f"""
v_mov_b32 {V(vH1)}, {V(vAcc)}
v_mov_b32 {V(vH1+1)}, {V(vAcc+1)}
v_permlane32_swap_b32 {V(vAcc)}, {V(vH1)}
v_permlane32_swap_b32 {V(vAcc+1)}, {V(vH1+1)}
""")
cfma(vAcc, vH1, vL1k, vAcc)
p(f"v_pk_fma_f32 {V(vLR,2)}, {V(vMR,2)}, {V(vAcc,2)}, {V(vLR,2)} op_sel_hi:[1,0,1]")
p(f"v_pk_fma_f32 {V(vLI,2)}, {V(vMI,2)}, {V(vAcc,2)}, {V(vLI,2)} op_sel_hi:[1,0,1]")
p(f"v_pk_fma_f32 {V(vLR,2)}, {V(vMI,2)}, {V(vAcc,2)}, {V(vLR,2)} op_sel:[0,1,0] neg_lo:[0,1,0] neg_hi:[0,1,0]")
p(f"v_pk_fma_f32 {V(vLI,2)}, {V(vMR,2)}, {V(vAcc,2)}, {V(vLI,2)} op_sel:[0,1,0]")
hR, hI = vLR, vLI
for s in range(16):
    scan_step(bR(s), bI(s), hR, hI, bR(s), bI(s))
    hR, hI = bR(s), bI(s)
    if s & 7 == 7:
        rb = s >> 3
        for kh in range(2):
            for e in range(2):
                o = vAcc + 16 * rb + 8 * kh + 4 * e
                src = vF + 32 * kh + 16 * rb + e
                ng = "-" if kh else ""
                for mm in range(4): cv(o+mm, f"{ng}{V(src+4*mm)}", f"{ng}{V(src+4*mm+2)}")
                p(f"buffer_store_dwordx4 {V(o,4)}, {V(vHO+rb)}, {S(D_WS,4)}, {S(sDd+kh)} offen offset:{(2*e+rb)*1024} sc1", tag="hst")
m = va.mark(); a = va(); b = va()
p(f"v_mov_b32 {V(a)}, 0\nv_mov_b32 {V(b)}, 1")
if S3 >= 0: bar()
p.wait_vm("hst")
p(f"""
s_mov_b64 exec, 1
buffer_store_dword {V(b)}, {V(a)}, {S(D_WS,4)}, {S(sF)} offen sc1
s_mov_b64 exec, -1
""")
va.release(m)
stamp(5)
p("L_A2:")
p.clean()
va.release(g2_mark)
a_cread()

LDS_A2 = 51200; AS = 208; LDS_AT = 147456; LDS_OG = 159744; RS = 400; RB = 0; RA = 65536
vAc2 = va(48, 4); vHF = va(32, 4); vT = va(4); vWA = va(2)
def g2_addr(red):
    m = va.mark(); a = va(); b = va(); c_ = va()
    p(f"""
v_bfe_u32 {V(a)}, {V(vLane)}, 1, 1
v_lshrrev_b32 {V(b)}, 4, {V(vLane)}
v_lshlrev_b32 {V(b)}, 3, {V(b)}
v_bfe_u32 {V(c_)}, {V(vLane)}, 2, 2
v_add_u32 {V(b)}, {V(b)}, {V(c_)}
v_lshl_add_u32 {V(b)}, {V(a)}, 2, {V(b)}
v_lshlrev_b32 {V(b)}, 4, {V(b)}
v_lshl_add_u32 {V(b)}, {V(a)}, 10, {V(b)}
v_and_b32 {V(a)}, 1, {V(vLane)}
v_lshl_add_u32 {V(b)}, {V(a)}, 3, {V(b)}
s_mul_i32 {S(sT0)}, {S(sHI)}, {8192+512}
s_add_u32 {S(sT0)}, {S(sT0)}, {red}
v_add_u32 {V(vT)}, {S(sT0)}, {V(b)}
v_xor_b32 {V(vT+1)}, 64, {V(vT)}
v_xor_b32 {V(vT+2)}, 512, {V(vT)}
v_xor_b32 {V(vT+3)}, 512, {V(vT+1)}
v_and_b32 {V(a)}, 15, {V(vLane)}
v_mul_u32_u24 {V(a)}, {RS}, {V(a)}
v_lshrrev_b32 {V(b)}, 4, {V(vLane)}
v_lshl_add_u32 {V(a)}, {V(b)}, 4, {V(a)}
s_mul_i32 {S(sT0)}, {S(sHI)}, {64*RS + 32*RS}
s_mul_i32 {S(sT1)}, {S(sLO)}, 192
s_add_u32 {S(sT1)}, {S(sT1)}, {red}
s_add_u32 {S(sT0)}, {S(sT0)}, {S(sT1)}
v_add_u32 {V(vWA)}, {S(sT0)}, {V(a)}
s_mul_i32 {S(sT0)}, {S(sHI)}, {64*RS - 32*RS}
s_add_u32 {S(sT0)}, {S(sT0)}, {S(sT1)}
s_add_u32 {S(sT0)}, {S(sT0)}, {32*RS}
v_add_u32 {V(vWA+1)}, {S(sT0)}, {V(a)}
""")
    va.release(m)
def h_reads(step):
    i, s = step >> 1, step & 1
    buf = vHF + 16 * (step & 1)
    out = []
    if step in (8, 16):
        out.append("\n".join(f"v_add_u32 {V(vT+k)}, 0x10000, {V(vT+k)}" for k in range(4)))
    for tb in range(4):
        hf, e = tb >> 1, tb & 1
        for hh in range(2):
            out.append(f"ds_read_b64_tr_b16 {V(buf+4*tb+2*hh,2)}, {V(vT+2*hf+hh)} offset:{(i&3)*16384 + s*4096 + e*2048}")
    return out
def g2_mfmas(step, extra):
    buf = vHF + 16 * (step & 1)
    for tb in range(4):
        for dj in range(3):
            d = vAc2 + (tb * 3 + dj) * 4
            p(f"v_mfma_f32_16x16x32_bf16 {V(d,4)}, {V(vC+((step%9)*3+dj)*4,4)}, {V(buf+4*tb,4)}, {'0' if (step == 9 or (step == 0 and tb >= 2)) else V(d,4)}")
            if extra:
                x = extra.pop(0)
                if x: p(x)
def red_write(tb, dj): return f"ds_write_b128 {V(vWA+(tb>>1))}, {V(vAc2+(tb*3+dj)*4,4)} offset:{(tb&1)*16*RS + dj*64}"
vRD = va(3); vGO = va(3); vOA = va(3); vA2 = va(3)
def final_addr():
    m = va.mark(); a = va(); b = va()
    p(f"s_mul_i32 {S(sT0)}, {S(sW)}, {8*RS}\ns_lshl_b32 {S(sT1)}, {S(sW)}, 5\ns_add_u32 {S(sT1)}, {S(sT1)}, {LDS_OG}\ns_mul_i32 {S(sT2)}, {S(sW)}, {8*AS}\ns_add_u32 {S(sT2)}, {S(sT2)}, {LDS_A2}")
    for i in range(3):
        p(f"""v_add_u32 {V(a)}, {64*i}, {V(vLane)}
v_mul_u32_u24 {V(b)}, 0xaab, {V(a)}
v_lshrrev_b32 {V(b)}, 16, {V(b)}
v_lshl_add_u32 {V(vA2+i)}, {V(a)}, 3, {S(sT2)}
v_lshl_add_u32 {V(vA2+i)}, {V(b)}, 4, {V(vA2+i)}
v_lshlrev_b32 {V(a)}, 4, {V(a)}
v_lshl_add_u32 {V(vRD+i)}, {V(b)}, 4, {V(a)}
v_add_u32 {V(vRD+i)}, {S(sT0)}, {V(vRD+i)}
v_lshl_add_u32 {V(vOA+i)}, {V(b)}, 2, {S(sT1)}
v_mul_u32_u24 {V(b)}, {2304-384}, {V(b)}
v_add_u32 {V(vGO+i)}, {V(a)}, {V(b)}""")
    p(f"""
s_lshl_b32 {S(sDd)}, {S(sRC64)}, 3
s_add_u32 {S(sDd)}, {S(sDd)}, {S(sW)}
s_mul_i32 {S(sDd)}, {S(sDd)}, {8*2304}
s_mul_i32 {S(sT1)}, {S(sCT)}, 384
s_add_u32 {S(sDd)}, {S(sDd)}, {S(sT1)}
""")
    va.release(m)
g2c_mark = va.mark()

vFl = va(); vFo = va()
p(f"""
v_min_u32 {V(vFo)}, 17, {V(vLane)}
v_lshlrev_b32 {V(vFo)}, 2, {V(vFo)}
s_lshl_b32 {S(sA)}, {S(sRC64)}, 7
s_add_u32 {S(sA)}, {S(sA)}, {WS_HFL}
""")
hf_load = lambda: p(f"buffer_load_dword {V(vFl)}, {V(vFo)}, {S(D_WS,4)}, {S(sA)} offen sc1")
hf_load()
g2_addr(RA); final_addr()
vHS = va()
p(f"""
v_lshlrev_b32 {V(vHS)}, 4, {V(vLane)}
s_mul_i32 {S(sB)}, {S(sRC64)}, 147456
s_lshl_b32 {S(sM0)}, {S(sQ)}, 12
s_add_u32 {S(sB)}, {S(sB)}, {S(sM0)}
s_add_u32 {S(sB)}, {S(sB)}, {WS_H}
s_lshl_b32 {S(sKO)}, {S(sROT2)}, 14
""")
spin(lambda: p(f"v_cmp_ne_u32 vcc, 1, {V(vFl)}"), hf_load)
stamp(6)
def h_issue(i):
    p(f"s_add_u32 m0, {S(sM0)}, {i*16384}\ns_add_u32 {S(sT1)}, {S(sB)}, {S(sKO)}")
    for j in range(4):
        p(f"buffer_load_dwordx4 {V(vHS)}, {S(D_WS,4)}, {S(sT1)} offen offset:{j*1024} sc1 lds", tag=f"h{i}")
    adv_ko(16384, 147456)
HA = opt("hahead", 3)
for i in range(HA): h_issue(i)
nxt = HA
for i in range(5):
    p.wait_vm(f"h{i}"); bar()
    k = 2 if i >= 5 - (9 - HA - 5) else 1
    for _ in range(k):
        if nxt < 9: h_issue(nxt); nxt += 1
while nxt < 9: h_issue(nxt); nxt += 1
p.wait_vm(); bar()
for r in h_reads(9): p(r)
for step in range(9, 18):
    if step < 17: g2_mfmas(step, h_reads(step + 1))
    else:
        p.wait_lgkm(); bar()
        ex = [None] * 3 + [red_write(k // 3, k % 3) for k in range(9)]
        g2_mfmas(step, ex)
        for k in range(9, 12): p(red_write(k // 3, k % 3))
p("L_final:")
p("s_waitcnt lgkmcnt(0)")
bar()
p.clean()
va.release(g2c_mark)
vOG3 = vHF; vAb = vHF + 6; vRA3 = vHF + 12; vU4 = vHF + 16
for i in range(3): p(f"v_add_u32 {V(vRA3+i)}, {RA}, {V(vRD+i)}")
for i in range(3):
    d = vAc2 + 16 * i
    p(f"ds_read_b64 {V(vAb+2*i,2)}, {V(vA2+i)}\nds_read2_b32 {V(vOG3+2*i,2)}, {V(vOA+i)} offset0:0 offset1:64")
    p(f"ds_read_b128 {V(d,4)}, {V(vRA3+i)}\nds_read_b128 {V(d+4,4)}, {V(vRA3+i)} offset:{64*RS}")
    p(f"ds_read_b128 {V(d+8,4)}, {V(vRD+i)}\nds_read_b128 {V(d+12,4)}, {V(vRD+i)} offset:{64*RS}")
for i in range(3):
    d = vAc2 + 16 * i; u = vU4 + 4 * i
    unpack(u, vAb + 2*i); unpack(u + 2, vAb + 2*i + 1)
    for k in (0, 2): p(f"v_pk_mul_f32 {V(u+k,2)}, {V(u+k,2)}, {V(vOG3+2*i,2)} op_sel:[0,1]")
    for k in (0, 2): p(f"v_pk_add_f32 {V(d+k,2)}, {V(d+k,2)}, {V(d+4+k,2)}")
    for k in (0, 2): p(f"v_pk_add_f32 {V(d+8+k,2)}, {V(d+8+k,2)}, {V(d+12+k,2)}")
    for k in (0, 2): p(f"v_pk_add_f32 {V(d+k,2)}, {V(d+k,2)}, {V(d+8+k,2)}")
    for k in (0, 2): p(f"v_pk_fma_f32 {V(d+k,2)}, {V(d+k,2)}, {V(vOG3+2*i,2)}, {V(u+k,2)} op_sel_hi:[1,0,1]")
    p(f"buffer_store_dwordx4 {V(d,4)}, {V(vGO+i)}, {S(D_OUT,4)}, {S(sDd)} offen")
if STAMPS: p("s_waitcnt vmcnt(0)")
stamp(7)
dump_stamps()
p("L_exit:\ns_endpgm")

p("L_GB:")
p.clean()
va.release(g2_mark)
sXB, sBB = sC, sDd
vX = va(); vB = va(); vGW = va(16, 4)
m = va.mark(); a = va(); b = va(); sw = va()
p(f"""
s_mul_i32 {S(sXB)}, {S(sRC)}, 147456
s_mul_i32 {S(sBB)}, {S(sPS)}, 73728
s_lshl_b32 {S(sM0)}, {S(sQ)}, 10
s_lshl_b32 {S(sT2)}, {S(sLO)}, 2
v_lshrrev_b32 {V(a)}, 4, {V(vLane)}
v_add_u32 {V(a)}, {S(sT2)}, {V(a)}
v_and_b32 {V(sw)}, 7, {V(vLane)}
v_xor_b32 {V(sw)}, {V(sw)}, {V(a)}
v_lshlrev_b32 {V(sw)}, 4, {V(sw)}
v_bfe_u32 {V(a)}, {V(vLane)}, 5, 1
v_lshlrev_b32 {V(a)}, 5, {V(a)}
v_bfe_u32 {V(b)}, {V(vLane)}, 3, 1
v_lshl_add_u32 {V(a)}, {V(b)}, 4, {V(a)}
v_bfe_u32 {V(b)}, {V(vLane)}, 4, 1
v_add_u32 {V(a)}, {V(a)}, {V(b)}
s_lshl_b32 {S(sT0)}, {S(sQ)}, 1
v_add_u32 {V(a)}, {S(sT0)}, {V(a)}
v_mul_u32_u24 {V(vX)}, 1152, {V(a)}
v_add_u32 {V(vX)}, {V(vX)}, {V(sw)}
v_bfe_u32 {V(a)}, v0, 3, 5
v_mul_u32_u24 {V(vB)}, 1152, {V(a)}
v_add_u32 {V(vB)}, {V(vB)}, {V(sw)}
v_lshrrev_b32 {V(a)}, 5, {V(vLane)}
v_lshlrev_b32 {V(a)}, 4, {V(a)}
s_lshl_b32 {S(sT0)}, {S(sPS)}, 7
v_add_u32 {V(a)}, {S(sKO if ROT else sT0)}, {V(a)}
""")
def g_issue(c):
    p(f"s_add_u32 {S(sT2)}, {S(sXB)}, {S(sKO)}\ns_add_u32 {S(sT3)}, {S(sBB)}, {S(sKO)}")
    lst = [(D_X, vX, sT2, (64*(i>>1) + 8*(i&1))*1152, i*4096) for i in range(4)]
    lst += [(D_BRE, vB, sT3, i*32*1152, 16384 + i*4096) for i in range(2)]
    lst += [(D_BIM, vB, sT3, i*32*1152, 24576 + i*4096) for i in range(2)]
    for d, vo, sb, so, lo in lst:
        p(f"s_add_u32 m0, {S(sM0)}, {gslot(c) + lo}\ns_add_u32 {S(sT1)}, {S(sb)}, {so}")
        if "--nogl" not in ARGS: p(f"buffer_load_dwordx4 {V(vo)}, {S(d,4)}, {S(sT1)} offen lds", tag=f"g{c}")
    adv_ko(128, 1152)
g_issue(0)
for s in range(4): p(f"global_load_dwordx4 {V(vGW+4*s,4)}, {V(a)}, {S(P_GW,2)} offset:{32*s}")
va.release(m)
g_issue(1)
vGF = va(16, 4); vG0 = va(2); vGA = va(); vGS = va()
m = va.mark(); a = va(); b = va()
frag_base(vGA, a, b)
p(f"""
s_lshl_b32 {S(sT0)}, {S(sQ)}, 12
v_add_u32 {V(vGA)}, {S(sT0)}, {V(vGA)}
v_bfe_u32 {V(a)}, {V(vLane)}, 2, 1
v_lshlrev_b32 {V(a)}, 5, {V(a)}
v_and_b32 {V(b)}, 1, {V(vLane)}
v_lshl_add_u32 {V(a)}, {V(b)}, 4, {V(a)}
v_bfe_u32 {V(b)}, {V(vLane)}, 3, 2
v_lshl_add_u32 {V(a)}, {V(b)}, 1, {V(a)}
v_bfe_u32 {V(b)}, {V(vLane)}, 1, 1
v_add_lshl_u32 {V(vGS)}, {V(a)}, {V(b)}, 2
""")
va.release(m)
rs = c_src_setup(); ra = c_addr_setup()
vDBG = va(); vGA4 = va(4)
for s_ in range(4): p(f"v_xor_b32 {V(vGA4+s_)}, {32*s_}, {V(vGA)}")
for c in range(9):
    p.wait_vm(f"g{c}"); p("s_waitcnt lgkmcnt(0)"); bar()
    if c == 0: stamp(1)
    if ROT == 0 or c == 0:
        l = newlab("gt")
        if ROT == 0: p(f"s_cmp_lg_u32 {S(sPS)}, {c}\ns_cbranch_scc1 {l}")
        p.begin_opt()
        if gslot(c) >> 16:
            for s_ in range(4): p(f"v_add_u32 {V(vGA4+s_)}, 0x10000, {V(vGA4+s_)}")
        for s_ in range(4): p(f"ds_read_b128 {V(vGF+4*s_,4)}, {V(vGA4+s_)} offset:{gslot(c) & 0xffff}")
        p.end_opt()
        p(f"{l}:")
    if c + 2 <= 8: g_issue(c + 2)
    if c == 6: dbg_load(vDBG, vL4)
    if c == 7:
        p(f"s_lshl_b32 {S(sKO)}, {S(sROT2)}, 7"); c_issue(0, rs)
stamp(2)
p("s_waitcnt lgkmcnt(0)")
p(f"v_mov_b32 {V(vG0)}, 0\nv_mov_b32 {V(vG0+1)}, 0")
for q in range(16): p(f"v_dot2c_f32_bf16 {V(vG0+(q&1))}, {V(vGF+q)}, {V(vGW+q)}")
p(f"""v_add_f32 {V(vG0)}, {V(vG0)}, {V(vG0+1)}
v_mov_b32 {V(vG0+1)}, {V(vG0)}
s_mul_i32 {S(sT2)}, {S(sRC)}, 9
s_add_u32 {S(sT2)}, {S(sT2)}, {S(sPS)}
s_lshl_b32 {S(sT2)}, {S(sT2)}, 1
s_add_u32 {S(sT2)}, {S(sT2)}, {S(sHI)}
s_lshl_b32 {S(sT2)}, {S(sT2)}, 8
s_lshl_b32 {S(sT1)}, {S(sLO)}, 5
s_add_u32 {S(sT2)}, {S(sT2)}, {S(sT1)}
s_add_u32 {S(sT2)}, {S(sT2)}, {WS_GP}
v_permlane32_swap_b32 {V(vG0)}, {V(vG0+1)}
v_add_f32 {V(vG0)}, {V(vG0)}, {V(vG0+1)}
v_min_u32 {V(vG0)}, -2, {V(vG0)}""")
check_cleared(vDBG, vL4)
p(f"""s_mov_b32 exec_hi, 0
buffer_store_dword {V(vG0)}, {V(vGS)}, {S(D_WS,4)}, {S(sT2)} offen sc1
s_mov_b32 exec_hi, -1""")
b_cstream_tail(rs, ra, 1, SYNC)
p("L_B2:")
p.clean()
va.release(g2c_mark)
stamp(5)
vGP = vAc2 + 24; vAf = va(2); vDS = vHF + 16; vAo = va(); vAS = va(); vAA = va(); vAW2 = va()
m = va.mark(); a = va(); b = va()
p(f"""
s_mul_i32 {S(sT0)}, {S(sCT)}, 192
s_mul_i32 {S(sT1)}, {S(sLO)}, 96
s_add_u32 {S(sT0)}, {S(sT0)}, {S(sT1)}
v_lshrrev_b32 {V(a)}, 4, {V(vLane)}
v_lshl_add_u32 {V(a)}, {V(a)}, 3, {S(sT0)}
""")
for dj in range(3): p(f"global_load_dwordx2 {V(vDS+2*dj,2)}, {V(a)}, {S(P_BDSK,2)} offset:{32*dj}")
p(f"""
s_lshr_b32 {S(sE)}, {S(sRC64)}, 1
s_mul_i32 {S(sE)}, {S(sE)}, {9*512}
s_and_b32 {S(sT1)}, {S(sRC64)}, 1
s_lshl_b32 {S(sT1)}, {S(sT1)}, 8
s_add_u32 {S(sE)}, {S(sE)}, {S(sT1)}
s_add_u32 {S(sE)}, {S(sE)}, {WS_GP}
s_add_u32 {S(sF)}, {S(sE)}, 4096
""")
def gp_load():
    for i in range(9):
        p(f"buffer_load_dword {V(vGP+i)}, {V(vL4)}, {S(D_WS,4)}, {S(sE + (i>>3))} offen offset:{(i&7)*512} sc1")
gp_load()
g2_addr(RB); final_addr()
p(f"""
v_min_u32 {V(vAo)}, 23, {V(vLane)}
v_lshlrev_b32 {V(vAo)}, 3, {V(vAo)}
s_lshr_b32 {S(sA)}, {S(sRC64)}, 4
s_mul_i32 {S(sA)}, {S(sA)}, 2304
s_mul_i32 {S(sT1)}, {S(sCT)}, 384
s_add_u32 {S(sA)}, {S(sA)}, {S(sT1)}
s_mul_i32 {S(sT1)}, {S(sLO)}, 192
s_add_u32 {S(sA)}, {S(sA)}, {S(sT1)}
s_add_u32 {S(sA)}, {S(sA)}, {WS_AFL}
v_lshrrev_b32 {V(a)}, 2, {V(vLane)}
v_and_b32 {V(b)}, 3, {V(vLane)}
v_lshlrev_b32 {V(vAS)}, 12, {V(a)}
v_lshl_add_u32 {V(vAS)}, {V(b)}, 4, {V(vAS)}
s_mul_i32 {S(sM0)}, {S(sQ)}, 3072
s_add_u32 {S(sM0)}, {S(sM0)}, {LDS_AT}
v_lshlrev_b32 {V(a)}, 6, {V(a)}
v_lshl_add_u32 {V(a)}, {V(b)}, 3, {V(a)}
v_add_u32 {V(vAA)}, {S(sM0)}, {V(a)}
s_mul_i32 {S(sB)}, {S(sCT)}, {96*4096}
s_mul_i32 {S(sT1)}, {S(sLO)}, {48*4096}
s_add_u32 {S(sB)}, {S(sB)}, {S(sT1)}
s_lshl_b32 {S(sT1)}, {S(sRC64)}, 7
s_add_u32 {S(sB)}, {S(sB)}, {S(sT1)}
s_lshl_b32 {S(sT1)}, {S(sHI)}, 6
s_add_u32 {S(sB)}, {S(sB)}, {S(sT1)}
s_add_u32 {S(sB)}, {S(sB)}, {WS_AT}
v_and_b32 {V(a)}, 15, {V(vLane)}
v_mul_u32_u24 {V(a)}, {AS}, {V(a)}
v_lshrrev_b32 {V(b)}, 4, {V(vLane)}
v_lshl_add_u32 {V(a)}, {V(b)}, 3, {V(a)}
s_mul_i32 {S(sT0)}, {S(sHI)}, {32*AS}
s_mul_i32 {S(sT1)}, {S(sLO)}, 96
s_add_u32 {S(sT0)}, {S(sT0)}, {S(sT1)}
s_add_u32 {S(sT0)}, {S(sT0)}, {LDS_A2}
v_add_u32 {V(vAW2)}, {S(sT0)}, {V(a)}
""")
va.release(m)
vXD = vAc2; vD = vHF; vU = vHF + 12
for k in range(6): unpack(vD + 2*k, vDS + k)
for q in range(6):
    unpack(vU, vXT + 2*q); unpack(vU + 2, vXT + 2*q + 1)
    for k in range(2): p(f"v_pk_mul_f32 {V(vXD+4*q+2*k,2)}, {V(vU+2*k,2)}, {V(vD+4*(q%3)+2*k,2)}")
def gp_check():
    p(f"v_max3_u32 {V(vGP+9)}, {V(vGP)}, {V(vGP+1)}, {V(vGP+2)}")
    for i in (3, 5, 7): p(f"v_max3_u32 {V(vGP+9)}, {V(vGP+i)}, {V(vGP+i+1)}, {V(vGP+9)}")
    p(f"v_cmp_eq_u32 vcc, -1, {V(vGP+9)}")
spin(gp_check, gp_load)
for i in range(1, 9): p(f"v_add_f32 {V(vGP)}, {V(vGP)}, {V(vGP+i)}")
p(f"""
v_cvt_pk_bf16_f32 {V(vGP)}, 0, {V(vGP)}
v_mul_f32 {V(vGP)}, {NLOG2E}, {V(vGP)}
v_exp_f32 {V(vGP)}, {V(vGP)}
v_add_u32 {V(vGP+2)}, {LDS_OG}, {V(vL4)}
v_add_f32 {V(vGP)}, 1.0, {V(vGP)}
v_rcp_f32 {V(vGP)}, {V(vGP)}
v_cvt_pk_bf16_f32 {V(vGP)}, 0, {V(vGP)}
v_sub_f32 {V(vGP+1)}, 1.0, {V(vGP)}
v_cvt_pk_bf16_f32 {V(vGP+1)}, 0, {V(vGP+1)}
ds_write2st64_b32 {V(vGP+2)}, {V(vGP+1)}, {V(vGP)} offset0:0 offset1:1
""")
af_load = lambda: p(f"buffer_load_dwordx2 {V(vAf,2)}, {V(vAo)}, {S(D_WS,4)}, {S(sA)} offen sc1")
def af_check(): p(f"v_max_u32 {V(vAf)}, {V(vAf)}, {V(vAf+1)}\nv_cmp_ne_u32 vcc, 1, {V(vAf)}")
def at_issue():
    for j in range(3):
        p(f"s_add_u32 m0, {S(sM0)}, {j*1024}\ns_add_u32 {S(sT1)}, {S(sB)}, {j*16*4096}")
        p(f"buffer_load_dwordx4 {V(vAS)}, {S(D_WS,4)}, {S(sT1)} offen sc1 lds", tag="at")
AF0, AF1 = opt("af0", 3), opt("af1", 7)
p(f"s_mov_b32 {S(sE)}, 0\ns_setprio 1")
bar()
stamp(6)
for r in h_reads(0): p(r)
for step in range(9):
    if step < 8:
        ex = h_reads(step + 1)
        if step & 1: ex = [None, None, "s_barrier"] + ex
    else:
        p.wait_lgkm(); bar()
        ex = [None] * 3 + [red_write(k // 3, k % 3) for k in range(9)]
    if step == AF0: af_load()
    if step == AF1:
        af_check()
        p("s_cbranch_vccnz L_at_late")
        p.begin_opt(); at_issue(); p(f"s_mov_b32 {S(sE)}, 1"); p.end_opt()
        p("L_at_late:")
    g2_mfmas(step, ex)
p("s_setprio 0")
for k in range(9, 12): p(red_write(k // 3, k % 3))
stamp(3)
p(f"s_cmp_lg_u32 {S(sE)}, 0\ns_cbranch_scc1 L_at_done")
p.begin_opt()
af_load()
spin(af_check, af_load)
at_issue()
p.end_opt()
p("L_at_done:\ns_waitcnt vmcnt(0)")
vAT = vHF
for tb in range(2):
    for dj in range(3):
        p(f"ds_read_b64_tr_b16 {V(vAT+(tb*3+dj)*2,2)}, {V(vAA)} offset:{dj*1024 + tb*32}")
for tb in range(2):
    for dj in range(3):
        p(f"ds_write_b64 {V(vAW2)}, {V(vAT+(tb*3+dj)*2,2)} offset:{tb*16*AS + dj*32}")
stamp(4)
bar()
p("s_branch L_final")

p("L_conv:")
p.clean()
L_U, L_KX, L_SCR = 0, 27648, 77568
sD0 = sA
p(f"""
s_mul_i32 {S(sD0)}, {S(sXCD)}, 72
s_cmp_ge_u32 {S(sIDX)}, 24
s_cselect_b32 {S(sNR)}, 3, 2
s_cmp_ge_u32 {S(sXCD)}, 3
s_cselect_b32 {S(sT2)}, 4, 8
s_cmp_ge_u32 {S(sXCD)}, 6
s_cselect_b32 {S(sT2)}, 0, {S(sT2)}
s_sub_u32 {S(sT0)}, {S(sIDX)}, 24
s_cmp_ge_u32 {S(sT0)}, {S(sT2)}
s_cselect_b32 {S(sT1)}, 24, 0
s_mul_i32 {S(sT0)}, {S(sT0)}, 6
s_add_u32 {S(sT0)}, {S(sT0)}, {S(sT1)}
s_mul_i32 {S(sT2)}, {S(sT2)}, 6
s_lshl_b32 {S(sT1)}, {S(sIDX)}, 2
s_add_u32 {S(sT2)}, {S(sT2)}, {S(sT1)}
s_sub_u32 {S(sT2)}, {S(sT2)}, 72
s_cmp_ge_u32 {S(sIDX)}, 24
s_cselect_b32 {S(sT0)}, {S(sT0)}, {S(sT2)}
s_add_u32 {S(sD0)}, {S(sD0)}, {S(sT0)}
s_mov_b32 {S(sEVEN)}, 0x55555555
s_mov_b32 {S(sEVEN+1)}, 0x55555555
s_lshl_b32 {S(sB)}, {S(sW)}, 13
s_add_u32 {S(sB)}, {S(sB)}, {L_SCR}
s_cmp_ge_u32 {S(sW)}, 4
s_cbranch_scc1 L_CK
""")
sSCR = sB
def par_loads(dst, sCh, nh_s, nh_i):
    m = va.mark(); a = va()
    p(f"s_lshl_b32 {S(sT1)}, {S(sCh)}, 8")
    if nh_s is not None: p(f"s_lshl_b32 {S(sT2)}, {S(nh_s)}, 7\ns_add_u32 {S(sT1)}, {S(sT1)}, {S(sT2)}")
    p(f"v_lshl_add_u32 {V(a)}, {V(vLane)}, 1, {S(sT1)}")
    for k, ptr in enumerate((P_LOGA, P_AIM, P_ACRE, P_ACIM)):
        p(f"global_load_ushort {V(dst+k)}, {V(a)}, {S(ptr,2)} offset:{nh_i*128}", tag="par")
    va.release(m)
def chan_load(dst, sCh, ptr, off=0):
    m = va.mark(); b = va()
    p(f"s_lshl_b32 {S(sT1)}, {S(sCh)}, 1\nv_mov_b32 {V(b)}, {S(sT1)}")
    p(f"global_load_ushort {V(dst)}, {V(b)}, {S(ptr,2)} offset:{off}", tag="par")
    va.release(m)
def kg_addr():
    w4 = va(4); r2 = va(2)
    m = va.mark(); a = va(); b = va(); c_ = va()
    p(f"""
v_lshl_add_u32 {V(a)}, {V(vLane)}, 6, {S(sSCR)}
v_bfe_u32 {V(b)}, {V(vLane)}, 1, 2
v_lshlrev_b32 {V(b)}, 4, {V(b)}
v_add_u32 {V(w4)}, {V(a)}, {V(b)}""")
    for q in range(1, 4): p(f"v_xor_b32 {V(c_)}, {16*q}, {V(b)}\nv_add_u32 {V(w4+q)}, {V(a)}, {V(c_)}")
    p(f"""
v_lshrrev_b32 {V(a)}, 5, {V(vLane)}
v_lshl_add_u32 {V(a)}, {V(a)}, 12, {S(sSCR)}
v_bfe_u32 {V(b)}, {V(vLane)}, 2, 2
v_lshl_add_u32 {V(a)}, {V(b)}, 6, {V(a)}
v_and_b32 {V(b)}, 1, {V(vLane)}
v_lshl_add_u32 {V(a)}, {V(b)}, 3, {V(a)}
v_bfe_u32 {V(b)}, {V(vLane)}, 3, 2
v_bfe_u32 {V(c_)}, {V(vLane)}, 1, 1
v_xor_b32 {V(b)}, {V(b)}, {V(c_)}
v_lshl_add_u32 {V(r2)}, {V(b)}, 4, {V(a)}
v_xor_b32 {V(b)}, 2, {V(b)}
v_lshl_add_u32 {V(r2+1)}, {V(b)}, 4, {V(a)}
v_add_u32 {V(r2+1)}, 256, {V(r2+1)}
""")
    va.release(m)
    return w4, r2
def kx_addr(sOff):
    e = va(3); m = va.mark(); a = va(); b = va()
    p(f"""
s_add_u32 {S(sT0)}, {S(sOff)}, {L_KX + 32}
v_and_b32 {V(a)}, 31, {V(vLane)}
v_lshrrev_b32 {V(b)}, 5, {V(vLane)}
v_lshl_add_u32 {V(a)}, {V(a)}, 4, {S(sT0)}
v_lshl_add_u32 {V(e)}, {V(b)}, 3, {V(a)}
v_lshl_add_u32 {V(e+1)}, {V(b)}, 9, {V(a)}
v_lshl_add_u32 {V(e+2)}, {V(b)}, 10, {V(a)}
""")
    va.release(m); return e
def dt_calc(dtv, src):
    p(f"v_lshlrev_b32 {V(dtv)}, 16, {V(src)}\nv_mul_f32 {V(dtv)}, {LOG2E}, {V(dtv)}\nv_exp_f32 {V(dtv)}, {V(dtv)}\nv_cvt_pk_bf16_f32 {V(dtv)}, 0, {V(dtv)}")
def kg_pass(pr, dtv, w4, r2, vKD, first, hooks=None):
    hooks = hooks or {}
    m = va.mark()
    er = va(); ph = va(); tq = va(2); vw = va(2); vW8 = va(2); vV = va(2)
    Fv = [va(2) for _ in range(9)]; G1 = [va(2) for _ in range(5)]
    G2 = [[va(2) for _ in range(3)] for _ in range(2)]; G3 = [[va(2) for _ in range(2)] for _ in range(4)]
    ob = [va(8, 4), va(8, 4)]
    fa = va(32, 4); fb = va(32, 4)
    for k in range(4): p(f"v_lshlrev_b32 {V(pr+k)}, 16, {V(pr+k)}")
    p(f"""
v_mul_f32 {V(er)}, {LOG2E}, {V(pr)}
v_exp_f32 {V(er)}, {V(er)}
v_mul_f32 {V(ph)}, {V(dtv)}, {V(pr+1)}
v_cvt_pk_bf16_f32 {V(er)}, 0, {V(er)}
v_mul_f32 {V(ph)}, {INV2PI}, {V(ph)}
v_mul_f32 {V(er)}, {V(dtv)}, {V(er)}
v_add_f32 {V(tq)}, {V(dtv)}, {V(dtv)}
v_mul_f32 {V(er)}, {NLOG2E}, {V(er)}
v_mul_f32 {V(Fv[0])}, {V(tq)}, {V(pr+2)}
v_mul_f32 {V(Fv[0]+1)}, {V(tq)}, {V(pr+3)}
""")
    cexp(vw, er, ph, 1, tq); cexp(vV, er, ph, 256, tq); cexp(vW8, er, ph, 8, tq)
    nb = [0]
    def granule(q, vals, neg):
        o = ob[nb[0] & 1]; nb[0] += 1
        ng = "-" if neg else ""
        def re(x): return "1.0" if x is None else V(x)
        def im(x): return "0" if x is None else ng + V(x+1)
        for k in range(4): cv(o+k, re(vals[2*k]), re(vals[2*k+1]))
        for k in range(4): cv(o+4+k, im(vals[2*k]), im(vals[2*k+1]))
        p(f"ds_write_b128 {V(w4+q)}, {V(o,4)}\nds_write_b128 {V(w4+q)}, {V(o+4,4)} offset:4096")
    def frag_reads(f):
        for s in range(8):
            for hh in range(2): p(f"ds_read_b64_tr_b16 {V(f+4*s+2*hh,2)}, {V(r2+hh)} offset:{512*s}", tag="kf")
    for a_ in range(1, 8): cmul(Fv[a_], Fv[a_-1], vw)
    granule(0, Fv[0:8], True)
    cmul(Fv[8], Fv[7], vw)
    for k in range(5): cmul(G1[k], Fv[2*k], vV)
    granule(1, [Fv[4], G1[0], G1[1], G1[2], Fv[8], G1[2], G1[3], G1[4]], True)
    if "a" in hooks: hooks["a"]()
    for k in range(3): cmul(G2[0][k], G1[2*k], vV)
    for k in range(3): cmul(G2[1][k], G2[0][k], vV)
    for j in range(4):
        for k in range(2): cmul(G3[j][k], G2[1][2*k] if j == 0 else G3[j-1][k], vV)
    granule(2, G2[0] + [G3[0][0]] + G2[1] + [G3[2][0]], True)
    granule(3, [G3[0][1], G3[1][0], G3[1][1], G3[1][1], G3[2][1], G3[3][0], G3[3][1], G3[3][1]], True)
    frag_reads(fa)
    if "b" in hooks: hooks["b"]()
    Ev = Fv
    for q in range(4):
        vals = []
        for k in range(8):
            bq = 8*q + k
            if bq == 0: vals.append(None)
            elif bq == 1: vals.append(vW8); prev = vW8
            else:
                d = Ev[bq % 9]; cmul(d, prev, vW8); vals.append(d); prev = d
        granule(q, vals, False)
        if q == 1 and "c" in hooks: hooks["c"]()
    frag_reads(fb)
    for s in range(8):
        p(f"v_mfma_f32_32x32x16_bf16 {V(vKD,16)}, {V(fa+4*s,4)}, {V(fb+4*s,4)}, {'0' if (first and s == 0) else V(vKD,16)}")
    va.release(m)
def kx_emit(vKD, e, copy, off):
    m = va.mark(); O = va(16, 4); tie = va(2); x = va(2)
    K = lambda v: V(vKD + v)
    for j in range(2): p(f"v_cndmask_b32 {V(tie+j)}, {K(12+2*j)}, {K(11+2*j)}, {S(sEVEN,2)}")
    if copy == 0:
        cv(O, K(0), K(1)); cv(O+1, K(2), K(3)); cv(O+2, K(5), K(5)); cv(O+3, K(6), K(7))
        cv(O+4, K(8), K(8)); cv(O+5, K(8), K(9)); cv(O+6, K(9), K(9)); cv(O+7, K(10), K(10))
        for j in range(2):
            lo, hi = K(11+2*j), K(12+2*j)
            cv(O+8+4*j, lo, lo); cv(O+9+4*j, lo, lo); cv(O+10+4*j, V(tie+j), hi); cv(O+11+4*j, hi, hi)
    else:
        cv(O, K(1), K(2)); cv(O+1, K(3), K(4)); cv(O+2, K(5), K(6)); cv(O+3, K(7), K(7))
        cv(O+4, K(8), K(8)); cv(O+5, K(9), K(9)); cv(O+6, K(9), K(10)); cv(O+7, K(10), K(10))
        for j in range(2):
            lo, hi = K(11+2*j), K(12+2*j)
            cv(O+8+4*j, lo, lo); cv(O+9+4*j, lo, V(tie+j)); cv(O+10+4*j, hi, hi); cv(O+11+4*j, hi, hi)
        cv(x, "0", K(0))
        p(f"v_add_u32 {V(x+1)}, -4, {V(e)}\ns_mov_b64 exec, 1\nds_write_b32 {V(x+1)}, {V(x)} offset:{off}\ns_mov_b64 exec, -1")
    p(f"""
ds_write_b64 {V(e)}, {V(O,2)} offset:{off}
ds_write_b64 {V(e)}, {V(O+2,2)} offset:{off+512}
ds_write_b128 {V(e+1)}, {V(O+4,4)} offset:{off+1024}
ds_write_b128 {V(e+2)}, {V(O+8,4)} offset:{off+2048}
ds_write_b128 {V(e+2)}, {V(O+12,4)} offset:{off+2560}
""")
    va.release(m)
def kx_pad(e, offs):
    m = va.mark(); z = va(4, 4); a = va()
    for k in range(4): p(f"v_mov_b32 {V(z+k)}, 0")
    p(f"v_add_u32 {V(a)}, -32, {V(e)}\ns_mov_b64 exec, 3")
    for o in offs: p(f"ds_write_b128 {V(a)}, {V(z,4)} offset:{o}")
    p("s_mov_b64 exec, -1")
    va.release(m)

va.release(free_mark)
vPR = va(9)
p(f"s_add_u32 {S(sC)}, {S(sD0)}, {S(sQ)}")
par_loads(vPR, sC, None, 0); chan_load(vPR + 8, sC, P_ALDT); par_loads(vPR + 4, sC, None, 1)
w4, r2 = kg_addr()
p(f"s_mul_i32 {S(sT3)}, {S(sQ)}, 8320")
vKE = kx_addr(sT3)
kx_pad(vKE, [0, 4160])
vCA = va(4); vCB = va(); vDW = va()
m = va.mark(); a = va(); b = va(); c_ = va()
p(f"""
v_and_b32 {V(a)}, 15, {V(vLane)}
v_lshrrev_b32 {V(b)}, 4, {V(vLane)}
v_add_u32 {V(c_)}, 1, {V(a)}
v_lshrrev_b32 {V(c_)}, 1, {V(c_)}
v_lshl_add_u32 {V(c_)}, {V(b)}, 2, {V(c_)}
v_lshlrev_b32 {V(c_)}, 2, {V(c_)}
v_add_u32 {V(vCA)}, 4160, {V(c_)}
v_cndmask_b32 {V(c_)}, {V(c_)}, {V(vCA)}, {S(sEVEN,2)}
s_mul_i32 {S(sT0)}, {S(sHI)}, 8320
s_lshl_b32 {S(sT1)}, {S(sLO)}, 8
s_add_u32 {S(sT0)}, {S(sT0)}, {S(sT1)}
s_add_u32 {S(sT0)}, {S(sT0)}, {L_KX}
v_add_u32 {V(vCA)}, {S(sT0)}, {V(c_)}
v_add_u32 {V(vCA+1)}, 1024, {V(vCA)}
v_add_u32 {V(vCA+2)}, 2048, {V(vCA)}
v_add_u32 {V(vCA+3)}, 3072, {V(vCA)}
s_mul_i32 {S(sT0)}, {S(sHI)}, 4608
s_sub_u32 {S(sT0)}, {S(sT0)}, {S(sT1)}
s_add_u32 {S(sT0)}, {S(sT0)}, {L_U + 512 + 16 - 192}
v_lshlrev_b32 {V(c_)}, 1, {V(a)}
v_sub_u32 {V(c_)}, {V(c_)}, {V(b)}
v_lshl_add_u32 {V(vCB)}, {V(c_)}, 4, {S(sT0)}
v_bfe_u32 {V(c_)}, {V(vLane)}, 1, 2
v_xor_b32 {V(c_)}, {V(c_)}, {V(b)}
v_lshlrev_b32 {V(c_)}, 4, {V(c_)}
v_lshl_add_u32 {V(c_)}, {V(a)}, 6, {V(c_)}
v_add_u32 {V(vDW)}, {S(sSCR)}, {V(c_)}
""")
va.release(m)
km = va.mark()
dtv = va(); vKD = va(16, 4)
dt_calc(dtv, vPR + 8)
stamp(1)
kg_pass(vPR, dtv, w4, r2, vKD, True)
kg_pass(vPR + 4, dtv, w4, r2, vKD, False)
kx_emit(vKD, vKE, 0, 0); kx_emit(vKD, vKE, 1, 4160)
stamp(2)
va.release(km)
vY = va(32, 4); vFA = [va(32, 4), va(32, 4)]; vFB = [va(32, 4), va(32, 4)]
def cv_reads(c):
    fa, fb = vFA[c & 1], vFB[c & 1]; out = []
    for k in range(8):
        o = ((k & 1) * 512 + 64 * c) // 4
        out += [f"ds_read_b128 {V(fb+4*k,4)}, {V(vCB)} offset:{512*k + 192 - 64*c}",
                f"ds_read2_b32 {V(fa+4*k,2)}, {V(vCA+(k>>1))} offset0:{o} offset1:{o+1}",
                f"ds_read2_b32 {V(fa+4*k+2,2)}, {V(vCA+(k>>1))} offset0:{o+2} offset1:{o+3}"]
    return out
p(f"s_mov_b32 {S(sE)}, {S(sNR)}\ns_waitcnt lgkmcnt(0)")
bar()
stamp(3)
p("s_setprio 1")
for r in cv_reads(0): p(r)
p("s_waitcnt lgkmcnt(0)")
p("L_cv:")
order = sorted([(mm, jb) for mm in range(8) for jb in range(8) if mm + jb < 8], key=lambda x: (x[0], x[1]))
for c in range(4):
    if c == 1: bar()
    if c == 3:
        bar()
        ad = "\n".join([f"v_add_u32 {V(vCB)}, {2*4608}, {V(vCB)}"] + [f"v_add_u32 {V(vCA+k)}, {2*8320}, {V(vCA+k)}" for k in range(4)])
        rd = cv_reads(0)
        ex = [None] * 36
        ex[0] = ad
        for j in range(6): ex[order.index((j, 0)) + 5] = f"ds_write_b128 {V(vDW)}, {V(vY+4*j,4)} offset:{1024*j}"
        for k in range(1, 36):
            if ex[k] is None and rd: ex[k] = rd.pop(0)
        assert not rd
    else:
        ex = cv_reads(c + 1)
    seen = set()
    for (mm, jb) in order:
        j = mm + jb; d = vY + 4 * j
        first = c == 0 and j not in seen; seen.add(j)
        p(f"v_mfma_f32_16x16x32_bf16 {V(d,4)}, {V(vFA[c&1]+4*mm,4)}, {V(vFB[c&1]+4*jb,4)}, {'0' if first else V(d,4)}")
        if ex:
            x = ex.pop(0)
            if x: p(x)
p(f"s_sub_u32 {S(sE)}, {S(sE)}, 1\ns_cmp_lg_u32 {S(sE)}, 0")
p(f"ds_write_b128 {V(vDW)}, {V(vY+24,4)} offset:{1024*6}\nds_write_b128 {V(vDW)}, {V(vY+28,4)} offset:{1024*7}")
p(f"s_waitcnt lgkmcnt(0)\ns_cbranch_scc1 L_cv")
p("s_setprio 0")
bar()
stamp(4)
p(f"s_cmp_lt_u32 {S(sIDX)}, 24\ns_cbranch_scc1 L_V4")
dump_stamps()
p("s_endpgm\nL_V4:")
bar()
p("s_branch L_A2")

p("L_CK:")
p.clean()
va.release(free_mark)
vPR = va(5); vDSK = va(3); vXR = va(32, 4); vUW = va(8)
m = va.mark(); a = va(); b = va(); z4 = va(4, 4)
p(f"""
s_add_u32 {S(sC)}, {S(sD0)}, {S(sHI)}
s_add_u32 {S(sDd)}, {S(sC)}, 4
s_min_u32 {S(sDd)}, {S(sDd)}, 575
s_mul_i32 {S(sT3)}, {S(sIDX)}, {opt("xrot", 9)}
s_add_u32 {S(sT3)}, {S(sT3)}, {S(sQ)}
v_mul_u32_u24 {V(a)}, 1152, {V(vLane)}
v_xor_b32 {V(b)}, 7, {V(vLane)}
v_lshlrev_b32 {V(b)}, 1, {V(b)}
s_lshl_b32 {S(sT2)}, {S(sD0)}, 1
""")
sPW = sF
p(f"s_sub_u32 {S(sPW)}, {S(sIDX)}, 18\ns_lshl_b32 {S(sPW)}, {S(sPW)}, 2\ns_add_u32 {S(sPW)}, {S(sPW)}, {S(sQ)}")
if PFG:
    for rnd in range(3):
        p(f"""s_add_u32 {S(sT0)}, {S(sPW)}, {rnd*56 + 18*PFG}
s_mul_i32 {S(sT1)}, {S(sT0)}, 3641
s_lshr_b32 {S(sT1)}, {S(sT1)}, 16
s_mul_i32 {S(sE)}, {S(sT1)}, 18
s_sub_u32 {S(sT0)}, {S(sT0)}, {S(sE)}
s_cmp_ge_u32 {S(sT0)}, 13
s_cselect_b32 {S(D_AGG)}, {S(P_BIM)}, {S(P_BRE)}
s_cselect_b32 {S(D_AGG+1)}, {S(P_BIM+1)}, {S(P_BRE+1)}
s_cselect_b32 {S(sE)}, 13, 8
s_and_b32 {S(sCNT)}, {S(sXCD)}, 1
s_lshl_b32 {S(sCNT)}, {S(sCNT)}, 2
s_sub_u32 {S(sE)}, {S(sCNT)}, {S(sE)}
s_lshr_b32 {S(sCNT)}, {S(sXCD)}, 1
s_lshl_b32 {S(sCNT)}, {S(sCNT)}, 3
s_cmp_lt_u32 {S(sT0)}, 8
s_cselect_b32 {S(D_AGG)}, {S(P_X)}, {S(D_AGG)}
s_cselect_b32 {S(D_AGG+1)}, {S(P_X+1)}, {S(D_AGG+1)}
s_cselect_b32 {S(D_AGG+2)}, {S(D_X+2)}, {S(D_BRE+2)}
s_cselect_b32 {S(sE)}, {S(sCNT)}, {S(sE)}
s_and_b32 {S(D_AGG+1)}, {S(D_AGG+1)}, 0xffff
s_mov_b32 {S(D_AGG+3)}, 0x20000
s_add_u32 {S(sT0)}, {S(sT0)}, {S(sE)}
s_mul_i32 {S(sT0)}, {S(sT0)}, {64*1152}
s_cmp_ge_u32 {S(sT1)}, 9
s_cselect_b32 {S(D_AGG+2)}, 0, {S(D_AGG+2)}
s_lshl_b32 {S(sT1)}, {S(sT1)}, 7
s_add_u32 {S(sT0)}, {S(sT0)}, {S(sT1)}
buffer_load_dword {V(vPF)}, {V(a)}, {S(D_AGG,4)}, {S(sT0)} offen""")
def x_loads(w):
    for i in range(8):
        p(f"""s_add_u32 {S(sT0)}, {S(sT3)}, {4*i}
s_and_b32 {S(sT0)}, {S(sT0)}, 31
s_mul_i32 {S(sT1)}, {S(sT0)}, {64*1152}
s_add_u32 {S(sT1)}, {S(sT1)}, {S(sT2)}""")
        if "--noxr" not in ARGS: p(f"buffer_load_dwordx{w} {V(vXR+4*i,w)}, {V(a)}, {S(D_X,4)}, {S(sT1)} offen", tag="xr")
p(f"s_cmp_lt_u32 {S(sIDX)}, 24\ns_cbranch_scc1 L_x2")
n0 = len(p.items)
x_loads(3)
p("s_branch L_x3\nL_x2:")
q_ = Prog(); p_save = p; p = q_; x_loads(2); p = p_save
for it in q_.items: p.items.append(Mark("dir", "  " + it.text))
p("L_x3:")
for i in range(8):
    p(f"""s_add_u32 {S(sT0)}, {S(sT3)}, {4*i}
s_and_b32 {S(sT0)}, {S(sT0)}, 31
s_lshl_b32 {S(sT0)}, {S(sT0)}, 7
v_add_u32 {V(vUW+i)}, {S(sT0)}, {V(b)}""")
par_loads(vPR, sDd, sLO, 0); chan_load(vPR + 4, sDd, P_ALDT)
chan_load(vDSK, sC, P_ADSK); chan_load(vDSK + 1, sC, P_ADSK, 4); chan_load(vDSK + 2, sDd, P_ADSK)
vDBG = va()
p(f"""
v_mov_b32 {V(z4)}, 0
v_mov_b32 {V(z4+1)}, 0
v_mov_b32 {V(z4+2)}, 0
v_mov_b32 {V(z4+3)}, 0
v_and_b32 {V(a)}, 255, v0
v_min_u32 {V(a)}, 191, {V(a)}
v_lshrrev_b32 {V(b)}, 5, {V(a)}
v_lshlrev_b32 {V(b)}, 12, {V(b)}
v_lshl_add_u32 {V(a)}, {V(a)}, 4, {V(b)}
ds_write_b128 {V(a)}, {V(z4,4)} offset:{L_U}
""")
stamp(1)
for i in range(8):
    for c in range(6):
        p(f"ds_write_b16{'_d16_hi' if c & 1 else ''} {V(vUW+i)}, {V(vXR+4*i+(c>>1))} offset:{L_U + c*4608 + 512}")
stamp(2)
va.release(vXR)
vDBG = va()
vER = va(2); vEU = va(); vLO = va()
m = va.mark(); a = va(); b = va()
p(f"""
v_lshrrev_b32 {V(a)}, 1, {V(vLane)}
v_lshlrev_b32 {V(a)}, 6, {V(a)}
s_lshl_b32 {S(sT0)}, {S(sHI)}, 14
s_lshl_b32 {S(sT1)}, {S(sLO)}, 12
s_add_u32 {S(sT0)}, {S(sT0)}, {S(sT1)}
s_add_u32 {S(sT0)}, {S(sT0)}, {L_SCR}
v_add_u32 {V(a)}, {S(sT0)}, {V(a)}
v_and_b32 {V(b)}, 1, {V(vLane)}
v_lshlrev_b32 {V(b)}, 1, {V(b)}
v_bfe_u32 {V(vER)}, {V(vLane)}, 2, 2
v_xor_b32 {V(b)}, {V(b)}, {V(vER)}
v_lshl_add_u32 {V(vER)}, {V(b)}, 4, {V(a)}
v_xor_b32 {V(b)}, 1, {V(b)}
v_lshl_add_u32 {V(vER+1)}, {V(b)}, 4, {V(a)}
v_lshlrev_b32 {V(vLO)}, 4, {V(vLane)}
s_mul_i32 {S(sT0)}, {S(sHI)}, 4608
s_lshl_b32 {S(sT1)}, {S(sLO)}, 11
s_add_u32 {S(sT0)}, {S(sT0)}, {S(sT1)}
s_add_u32 {S(sT0)}, {S(sT0)}, {L_U + 512}
v_add_u32 {V(vEU)}, {S(sT0)}, {V(vLO)}
s_lshl_b32 {S(sE)}, {S(sC)}, 12
s_add_u32 {S(sE)}, {S(sE)}, {S(sT1)}
s_add_u32 {S(sE)}, {S(sE)}, {WS_AT}
""")
va.release(m)
for r in range(3): p(f"v_lshlrev_b32 {V(vDSK+r)}, 16, {V(vDSK+r)}")
def k_epilogue(r):
    m = va.mark(); y = va(32, 4); u = va(8, 4); t = va(2); o = va(8, 4)
    for h in range(2):
        for pw in range(2):
            for k in range(2):
                p(f"ds_read_b128 {V(y+16*h+8*pw+4*k,4)}, {V(vER+k)} offset:{pw*8192 + h*2048}")
        p(f"ds_read_b128 {V(u+4*h,4)}, {V(vEU)} offset:{r*2*4608 + h*1024}")
    p(f"s_add_u32 {S(sT0)}, {S(sE)}, {r*8192}")
    for h in range(2):
        yy = y + 16*h
        for k in range(8): p(f"v_add_f32 {V(yy+k)}, {V(yy+k)}, {V(yy+8+k)}")
        for k in range(4):
            unpack(t, u + 4*h + k)
            p(f"v_fmac_f32 {V(yy+7-2*k)}, {V(t)}, {V(vDSK+r)}\nv_fmac_f32 {V(yy+6-2*k)}, {V(t+1)}, {V(vDSK+r)}")
        for k in range(4): cv(o+4*h+k, V(yy+2*k), V(yy+2*k+1))
        p(f"buffer_store_dwordx4 {V(o+4*h,4)}, {V(vLO)}, {S(D_WS,4)}, {S(sT0)} offen offset:{h*1024} sc1")
    va.release(m)
def k_flags(n):
    m = va.mark(); a = va(); b = va()
    p(f"""
s_mul_i32 {S(sT0)}, {S(sLO)}, 2304
s_lshl_b32 {S(sT1)}, {S(sC)}, 2
s_add_u32 {S(sT0)}, {S(sT0)}, {S(sT1)}
s_add_u32 {S(sT0)}, {S(sT0)}, {WS_AFL}
v_lshlrev_b32 {V(a)}, 3, {V(vLane)}
v_mov_b32 {V(b)}, 1
s_waitcnt vmcnt(0)
s_mov_b64 exec, {(1 << n) - 1}
buffer_store_dword {V(b)}, {V(a)}, {S(D_WS,4)}, {S(sT0)} offen sc1
s_mov_b64 exec, -1
""")
    va.release(m)
p("s_waitcnt vmcnt(0)")
if PFC:
    m = va.mark(); a = va()
    p(f"v_lshlrev_b32 {V(a)}, 7, {V(vLane)}")
    for rnd in range(3):
        p(f"""s_add_u32 {S(sT0)}, {S(sPW)}, {rnd*56}
s_cmp_ge_u32 {S(sT0)}, 81
s_cselect_b32 {S(D_AGG)}, {S(P_CIM)}, {S(P_CRE)}
s_cselect_b32 {S(D_AGG+1)}, {S(P_CIM+1)}, {S(P_CRE+1)}
s_cselect_b32 {S(sT1)}, 81, 0
s_and_b32 {S(D_AGG+1)}, {S(D_AGG+1)}, 0xffff
s_mov_b32 {S(D_AGG+2)}, 663552
s_mov_b32 {S(D_AGG+3)}, 0x20000
s_sub_u32 {S(sT0)}, {S(sT0)}, {S(sT1)}
s_lshl_b32 {S(sT0)}, {S(sT0)}, 13
buffer_load_dword {V(vPF)}, {V(a)}, {S(D_AGG,4)}, {S(sT0)} offen""")
    va.release(m)
p("s_waitcnt lgkmcnt(0)")
p(f"s_cmp_lt_u32 {S(sIDX)}, 24\ns_cbranch_scc1 L_K4")
kmark = va.mark()
w4, r2 = kg_addr()
p(f"s_add_u32 {S(sT3)}, {S(sQ)}, 8\ns_mul_i32 {S(sT3)}, {S(sT3)}, 4160")
vKE = kx_addr(sT3)
kx_pad(vKE, [0])
dtv = va(); vKD = va(16, 4); vXW = va(); vXRd = va()
p(f"""v_add_u32 {V(vXW)}, {S(sSCR)}, {V(vLO)}
s_xor_b32 {S(sT0)}, {S(sW)}, 1
s_lshl_b32 {S(sT0)}, {S(sT0)}, 13
s_add_u32 {S(sT0)}, {S(sT0)}, {L_SCR}
v_add_u32 {V(vXRd)}, {S(sT0)}, {V(vLO)}""")
dt_calc(dtv, vPR + 4)
bar()
stamp(3)
PLAIN[0] = True
kg_pass(vPR, dtv, w4, r2, vKD, True, {"a": bar, "c": bar})
PLAIN[0] = False
for q in range(4): p(f"ds_write_b128 {V(vXW)}, {V(vKD+4*q,4)} offset:{1024*q}")
dbg_load(vDBG, vL4)
p.wait_lgkm(); bar()
m = va.mark(); kp = va(16, 4)
for q in range(4): p(f"ds_read_b128 {V(kp+4*q,4)}, {V(vXRd)} offset:{1024*q}")
for q in range(15): p(f"v_add_f32 {V(vKD+q)}, {V(vKD+q)}, {V(kp+q)}")
va.release(m)
p(f"s_cmp_lg_u32 {S(sLO)}, 0\ns_cbranch_scc1 L_ke1")
p.begin_opt(); kx_emit(vKD, vKE, 0, 0); p("s_branch L_ke2"); p.end_opt()
p("L_ke1:")
p.begin_opt(); kx_emit(vKD, vKE, 1, 0); p.end_opt()
p("L_ke2:")
k_epilogue(0)
p("s_waitcnt lgkmcnt(0)"); bar()
check_cleared(vDBG, vL4)
bar()
k_epilogue(1)
bar()
bar()
stamp(4)
k_epilogue(2)
k_flags(3)
stamp(5)
dump_stamps()
p("s_endpgm")
p("L_K4:")
p.clean()
va.release(kmark)
bar()
stamp(3)
dbg_load(vDBG, vL4)
bar(); bar()
check_cleared(vDBG, vL4)
bar()
k_epilogue(0)
bar()
bar()
k_epilogue(1)
bar()
k_flags(2)
va.release(g2_mark)
rs = c_src_setup(); ra = c_addr_setup()
p(f"s_lshl_b32 {S(sKO)}, {S(sROT2)}, 7")
b_cstream_tail(rs, ra, 0, {})
p("s_branch L_B2")
p("L_codeend:")

body = p.finalize()
hdr = open("gated_mix__ssm_conv_s4d__ssm_conv_s5__prompt.s.ref").read().split("; Override launch")[0]
txt = hdr + f"""; @launch grid=(256,1,1) block=(512,1,1) lds=163840
.amdgcn_target "amdgcn-amd-amdhsa--gfx950"
.text
.globl {KN}
.p2align 8
.type {KN},@function
{KN}:
{body}
  s_endpgm
.section .rodata,"a"
.p2align 6
.amdhsa_kernel {KN}
  .amdhsa_next_free_vgpr 256
  .amdhsa_next_free_sgpr 102
  .amdhsa_accum_offset 256
  .amdhsa_group_segment_fixed_size 0
  .amdhsa_kernarg_size 160
  .amdhsa_user_sgpr_count 2
  .amdhsa_user_sgpr_kernarg_segment_ptr 1
  .amdhsa_system_sgpr_workgroup_id_x 1
.end_amdhsa_kernel
"""
open(OUTF, "w").write(txt)
print("vgpr high", va.hi, "lines", txt.count("\n"))
```
